```python
import torch

def _softmax(x, axis=-1):
    return torch.softmax(x, dim=axis)

def _gelu(x):
    return torch.nn.functional.gelu(x, approximate='tanh')

def _silu(x):
    return torch.nn.functional.silu(x)

def _sigmoid(x):
    return torch.sigmoid(x)

def _layernorm(x, axis=-1, eps=1e-05):
    m = x.mean(dim=axis, keepdim=True)
    v = x.var(dim=axis, keepdim=True, unbiased=False)
    return (x - m) / torch.sqrt(v + eps)

def _scatter_add(tgt, idx, src, axis=0):
    return tgt.clone().index_add_(axis, idx, src)

def _segment_sum(src, seg, n):
    out = torch.zeros((n,) + src.shape[1:], dtype=src.dtype)
    return out.index_add_(0, seg, src)

def _pad(x, pw):
    flat = tuple((v for pair in reversed(pw) for v in pair))
    return torch.nn.functional.pad(x, flat)
kernel_name = 'concat_heads__spectral_gfnet__memory_aug_recurrent_mem_tr__prompt'

def setup_inputs():

    _w = lambda a: (lambda t: t.to(torch.bfloat16) if t.is_floating_point() else t)(torch.as_tensor(a))

    def _A_setup():
        B, S, D = (1, 2048, 640)
        Df = D // 2 + 1
        return {'x': _w((lambda *s: torch.randn(*s, dtype=torch.bfloat16) * 0.05)(B, S, D)), 'w_r': _w((lambda *s: torch.randn(*s, dtype=torch.bfloat16) * 3.2)(S, Df) * 0.02), 'w_i': _w((lambda *s: torch.randn(*s, dtype=torch.bfloat16) * 3.2)(S, Df) * 0.02)}
    _A_in = _A_setup()

    def _B_setup():
        B, S, Dm = (1, 2048, 640)
        H, Dh = (32, 128)
        M, seg = (8, 32)
        seg = min(seg, S)
        S = S // seg * seg
        return {'x': _w((lambda *s: torch.randn(*s, dtype=torch.bfloat16) * 0.05)(B, S, Dm)), 'mem0': _w((lambda *s: torch.randn(*s, dtype=torch.bfloat16) * 0.4)(B, M, Dm)), 'Wq': _w((lambda *s: torch.randn(*s, dtype=torch.bfloat16) * 6.4)(Dm, H, Dh) * Dm ** (-0.5)), 'Wk': _w((lambda *s: torch.randn(*s, dtype=torch.bfloat16) * 6.4)(Dm, H, Dh) * Dm ** (-0.5)), 'Wv': _w((lambda *s: torch.randn(*s, dtype=torch.bfloat16) * 0.4)(Dm, H, Dh) * Dm ** (-0.5)), 'Wo': _w((lambda *s: torch.randn(*s, dtype=torch.bfloat16) * 0.4)(H, Dh, Dm) * (H * Dh) ** (-0.5)), 'seg_len': seg}
    _B_in = _B_setup()
    return {'A_x': _A_in['x'], 'A_w_r': _A_in['w_r'], 'A_w_i': _A_in['w_i'], 'B_x': _B_in['x'], 'B_mem0': _B_in['mem0'], 'B_Wq': _B_in['Wq'], 'B_Wk': _B_in['Wk'], 'B_Wv': _B_in['Wv'], 'B_Wo': _B_in['Wo'], 'B_seg_len': _B_in['seg_len']}

def reference(A_x, A_w_r, A_w_i, B_x, B_mem0, B_Wq, B_Wk, B_Wv, B_Wo, B_seg_len):

    def _A_ref(x, w_r, w_i):
        B, S, D = x.shape
        X = (lambda x, axes=(-2, -1): torch.fft.rfft2(x.float(), dim=axes))(x, axes=(-2, -1))
        W = w_r + 1j * w_i
        X = X * W
        y = (lambda x, s, axes=(-2, -1): torch.fft.irfft2(x, s=s, dim=axes).to(torch.bfloat16))(X, (S, D), axes=(-2, -1))
        return y

    def _B_ref(x, mem0, Wq, Wk, Wv, Wo, seg_len):
        B, S, Dm = x.shape
        H, Dh = (Wq.shape[1], Wq.shape[2])
        M = mem0.shape[1]
        scale = Dh ** (-0.5)
        n_seg = S // seg_len
        L = M + seg_len
        idx = torch.arange(L)
        mask = (idx[:, None] < M) | (idx[:, None] >= idx[None, :])
        mem = mem0
        outs = []
        for s in range(n_seg):
            xs = x[:, s * seg_len:(s + 1) * seg_len, :].clone()
            h = torch.concatenate([mem, xs], axis=1)
            q = torch.einsum('btd,dhe->bhte', h, Wq)
            k = torch.einsum('btd,dhe->bhte', h, Wk)
            v = torch.einsum('btd,dhe->bhte', h, Wv)
            scores = torch.einsum('bhqe,bhke->bhqk', q, k) * scale
            scores = torch.where(mask[None, None], scores, -1000000000.0)
            p = _softmax(scores, axis=-1)
            o = torch.einsum('bhqk,bhke->bhqe', p, v)
            o = torch.einsum('bhte,hed->btd', o, Wo)
            mem = o[:, :M, :].clone()
            outs.append(o[:, M:, :])
        return torch.concatenate(outs, axis=1)
    a = _A_ref(A_x, A_w_r, A_w_i)
    b = _B_ref(B_x, B_mem0, B_Wq, B_Wk, B_Wv, B_Wo, B_seg_len)
    return torch.concatenate([a, b], axis=-1)
```

```python
import re

REG_RE = re.compile(r'\b([vas])(\d+)\b|\b([vas])\[(\d+):(\d+)\]|\b(vcc_lo|vcc_hi|vcc|exec_lo|exec_hi|exec|m0|scc)\b')


def regs_of(op):
    out = set()
    for m in REG_RE.finditer(op):
        if m.group(1):
            out.add(m.group(1) + m.group(2))
        elif m.group(3):
            for i in range(int(m.group(4)), int(m.group(5)) + 1):
                out.add(m.group(3) + str(i))
        else:
            n = m.group(6)
            if n.startswith('vcc'):
                out.add('vcc')
            elif n.startswith('exec'):
                out.add('exec')
            else:
                out.add(n)
    return out


def split_ops(s):
    ops, depth, cur = [], 0, ''
    for ch in s:
        if ch == '[' or ch == '(':
            depth += 1
        if ch == ']' or ch == ')':
            depth -= 1
        if ch == ',' and depth == 0:
            ops.append(cur.strip())
            cur = ''
        else:
            cur += ch
    if cur.strip():
        ops.append(cur.strip())
    return ops


TRANS = ('v_exp_f32', 'v_log_f32', 'v_rcp_f32', 'v_rsq_f32', 'v_sqrt_f32', 'v_sin_f32', 'v_cos_f32',
         'v_rcp_iflag_f32')


def mfma_passes(mn):
    if '32x32x16' in mn or '32x32x8' in mn or '32x32x32_bf16' in mn:
        return 8
    if '16x16x32' in mn or '16x16x16' in mn or '16x16x64_bf16' in mn:
        return 4
    raise ValueError('unknown mfma ' + mn)


class Ins:
    __slots__ = ('text', 'mn', 'kind', 'wr', 'rd', 'srcC', 'passes', 'states', 'target', 'label', 'dpp',
                 'lds_dma', 'wide_store_data', 'sgpr_rd_valu', 'lane_sel')

    def __init__(self, text):
        self.text = text
        self.label = None
        self.target = None
        self.kind = 'other'
        self.wr = set()
        self.rd = set()
        self.srcC = set()
        self.passes = 0
        self.states = 1
        self.dpp = False
        self.lds_dma = False
        self.wide_store_data = set()
        self.lane_sel = set()
        t = text.split(';')[0].strip()
        if not t or t.startswith('.'):
            self.kind = 'none'
            self.states = 0
            self.mn = ''
            return
        if t.endswith(':'):
            self.kind = 'label'
            self.label = t[:-1]
            self.states = 0
            self.mn = ''
            return
        parts = t.split(None, 1)
        mn = parts[0]
        self.mn = mn
        rest = parts[1] if len(parts) > 1 else ''
        ops = split_ops(rest)
        R = [regs_of(o) for o in ops]
        if mn == 's_nop':
            self.kind = 'nop'
            self.states = int(ops[0], 0) + 1
            return
        if mn.startswith('s_cbranch') or mn == 's_branch':
            self.kind = 'branch'
            self.target = ops[0]
            return
        if mn.startswith('v_mfma') or mn.startswith('v_smfmac'):
            self.kind = 'mfma'
            self.passes = mfma_passes(mn)
            self.wr = set(R[0])
            if mn.startswith('v_smfmac'):
                self.srcC = set(R[0])
                self.rd = R[1] | R[2] | R[3]
            else:
                self.srcC = set(R[3])
                self.rd = R[1] | R[2]
            return
        if mn.startswith('v_'):
            self.kind = 'valu'
            if 'dpp' in mn or 'row_' in rest or 'quad_perm' in rest:
                self.dpp = True
            if mn.startswith('v_cmp'):
                self.wr = set(R[0])
                if mn.startswith('v_cmpx'):
                    self.wr.add('exec')
                for r in R[1:]:
                    self.rd |= r
            elif mn.startswith('v_permlane'):
                self.wr = R[0] | R[1]
                self.rd = R[0] | R[1]
            elif mn.startswith('v_add_co') or mn.startswith('v_sub_co') or mn.startswith('v_addc_co') or mn.startswith('v_subb_co') or mn.startswith('v_mad_u64'):
                self.wr = R[0] | R[1]
                for r in R[2:]:
                    self.rd |= r
            elif mn == 'v_nop':
                pass
            else:
                self.wr = set(R[0])
                for r in R[1:]:
                    self.rd |= r
                if mn.startswith('v_fmac') or mn.startswith('v_pk_fmac') or mn.startswith('v_dot2c') or mn.startswith('v_writelane'):
                    self.rd |= R[0]
                if mn.startswith('v_cndmask') and len(ops) == 3:
                    self.rd.add('vcc')
                if (mn.startswith('v_readlane') or mn.startswith('v_writelane')) and len(R) > 2:
                    self.lane_sel = set(R[2])
            return
        if mn.startswith('ds_'):
            self.kind = 'ds'
            if mn.startswith('ds_read') or mn.startswith('ds_bpermute') or mn.startswith('ds_permute') or mn.startswith('ds_swizzle') or '_rtn' in mn:
                self.wr = set(R[0])
                for r in R[1:]:
                    self.rd |= r
            else:
                for r in R:
                    self.rd |= r
            return
        if mn.startswith('global_') or mn.startswith('buffer_') or mn.startswith('flat_'):
            self.kind = 'vmem'
            words = rest.replace(',', ' ').split()
            is_lds = ('lds' in words) or ('_lds_' in mn)
            if is_lds:
                self.lds_dma = True
                for r in R:
                    self.rd |= r
                self.rd.add('m0')
            elif '_load' in mn:
                self.wr = set(R[0])
                for r in R[1:]:
                    self.rd |= r
            elif '_atomic' in mn:
                if 'sc0' in words:
                    self.wr = set(R[0])
                    for r in (R[1:] if mn.startswith('global') else R):
                        self.rd |= r
                else:
                    for r in R:
                        self.rd |= r
            elif '_store' in mn:
                for r in R:
                    self.rd |= r
                if 'x4' in mn or 'x3' in mn:
                    self.wide_store_data = set(R[1] if mn.startswith('global') or mn.startswith('flat') else R[0])
            else:
                for r in R:
                    self.rd |= r
            return
        if mn.startswith('s_'):
            self.kind = 'salu'
            if mn.startswith('s_load') or mn.startswith('s_buffer_load') or mn.startswith('s_memtime') or mn.startswith('s_memrealtime'):
                self.kind = 'smem'
                self.wr = set(R[0])
                for r in R[1:]:
                    self.rd |= r
            elif mn.startswith('s_cmp') or mn.startswith('s_bitcmp') or mn in ('s_waitcnt', 's_barrier', 's_sleep', 's_setprio', 's_endpgm', 's_sendmsg', 's_setpc_b64'):
                for r in R:
                    self.rd |= r
            else:
                if R:
                    self.wr = set(R[0])
                for r in R[1:]:
                    self.rd |= r
                if 'saveexec' in mn:
                    self.wr.add('exec')
            return


def is_vec(r):
    return r[0] in 'va' and r[1:].isdigit()


def is_sgpr(r):
    return (r[0] == 's' and r[1:].isdigit()) or r == 'vcc'


XDL_VALU = {2: 5, 4: 8, 8: 12, 16: 20}
XDL_COVL = {2: 4, 4: 6, 8: 10, 16: 18}
XDL_WARC = {2: 1, 4: 3, 8: 7, 16: 15}


def need(p, c):
    n = 0
    if p.kind == 'mfma':
        D = p.wr
        if c.kind == 'mfma':
            if D & c.rd:
                n = max(n, XDL_VALU[p.passes])
            if D & c.srcC:
                if D == c.srcC and p.passes == c.passes:
                    n = max(n, 0 if p.passes > 2 else 2)
                else:
                    n = max(n, XDL_COVL[p.passes])
            elif D & c.wr:
                n = max(n, XDL_COVL[p.passes])
        elif c.kind in ('valu',):
            if D & (c.rd | c.wr):
                n = max(n, XDL_VALU[p.passes])
            if p.srcC & c.wr:
                n = max(n, XDL_WARC[p.passes])
        elif c.kind in ('vmem', 'ds'):
            if D & (c.rd | c.wr):
                n = max(n, XDL_VALU[p.passes])
            if p.srcC & c.wr:
                n = max(n, XDL_VALU[p.passes])
    elif p.kind == 'valu':
        vw = {r for r in p.wr if is_vec(r)}
        sw = {r for r in p.wr if is_sgpr(r)}
        if c.kind == 'mfma':
            if vw & (c.rd | c.srcC):
                n = max(n, 2)
            if 'exec' in p.wr:
                n = max(n, 4)
        if c.kind == 'valu':
            if sw & c.rd:
                n = max(n, 2)
            if sw & c.lane_sel:
                n = max(n, 4)
            if vw & c.rd:
                if c.dpp:
                    n = max(n, 2)
                if c.mn.startswith('v_permlane'):
                    n = max(n, 2)
                if c.mn.startswith('v_readlane') or c.mn.startswith('v_readfirstlane'):
                    n = max(n, 1)
                if p.mn.replace('_e32', '').replace('_e64', '') in TRANS:
                    n = max(n, 1)
                if p.mn.startswith('v_dot') and not (c.mn == p.mn):
                    n = max(n, 3)
                if p.mn.startswith('v_dot') and c.mn == p.mn:
                    n = max(n, 3)
            if p.mn.startswith('v_dot') and (vw & c.wr) and c.mn != p.mn:
                n = max(n, 3)
            if 'exec' in p.wr:
                n = max(n, 5)
        if c.kind == 'vmem':
            if sw & c.rd:
                n = max(n, 5)
        if c.kind == 'salu' or c.kind == 'smem' or c.kind == 'branch':
            if sw & c.rd:
                n = max(n, 1)
        if c.kind == 'branch' and 'vcc' in c.mn and 'vcc' in p.wr:
            n = max(n, 1)
    elif p.kind == 'salu':
        if 'm0' in p.wr and (c.lds_dma or 'm0' in c.rd):
            n = max(n, 1)
    elif p.kind == 'vmem':
        if p.wide_store_data and (p.wide_store_data & c.wr):
            n = max(n, 2)
    return n


MAXW = 20


def fix_hazards(lines):
    ins = [Ins(l) for l in lines]
    out = []
    for c in ins:
        if c.kind not in ('none', 'label', 'nop'):
            dist = 0
            req = 0
            for p in reversed(out):
                if dist >= MAXW:
                    break
                if p.kind == 'branch' and p.mn == 's_branch':
                    break
                if p.mn in ('s_endpgm', 's_setpc_b64'):
                    break
                k = need(p, c) - dist
                if k > req:
                    req = k
                dist += p.states
            while req > 0:
                k = min(req, 16)
                out.append(Ins('    s_nop %d' % (k - 1)))
                req -= k
        out.append(c)
    changed = True
    while changed:
        changed = False
        labels = {x.label: i for i, x in enumerate(out) if x.kind == 'label'}
        for bi, b in enumerate(out):
            if b.kind != 'branch' or b.target not in labels:
                continue
            li = labels[b.target]
            req = 0
            dc = 0
            j = li
            while j < len(out) and dc < MAXW:
                c = out[j]
                if c.kind not in ('none', 'label', 'nop'):
                    dist = dc
                    for pi in range(bi, -1, -1):
                        p = out[pi]
                        if dist >= MAXW:
                            break
                        if pi != bi and p.kind == 'branch' and p.mn == 's_branch':
                            break
                        if pi != bi:
                            k = need(p, c) - dist
                            if k > req:
                                req = k
                        dist += p.states
                    if c.kind == 'branch' and c.mn == 's_branch':
                        break
                dc += c.states
                j += 1
            if req > 0:
                k = min(req, 16)
                out.insert(bi, Ins('    s_nop %d' % (k - 1)))
                changed = True
                break
    return [x.text for x in out]


class Asm:
    def __init__(self):
        self.lines = []
        self._lab = 0

    def __call__(self, s):
        for l in s.split('\n'):
            l = l.strip()
            if l:
                self.lines.append(('    ' + l) if not l.endswith(':') else l)

    def raw(self, s):
        self.lines.append(s)

    def label(self, base='L'):
        self._lab += 1
        return '.%s_%d' % (base, self._lab)

    def put(self, lab):
        self.lines.append(lab + ':')

    def text(self):
        return '\n'.join(fix_hazards(self.lines)) + '\n'


def v(i, n=1):
    return 'v%d' % i if n == 1 else 'v[%d:%d]' % (i, i + n - 1)


def a(i, n=1):
    return 'a%d' % i if n == 1 else 'a[%d:%d]' % (i, i + n - 1)


def s(i, n=1):
    return 's%d' % i if n == 1 else 's[%d:%d]' % (i, i + n - 1)
```

```python
from asmlib import Asm, v, a, s

NAME = 'concat_heads__spectral_gfnet__memory_aug_recurrent_mem_tr__prompt'
MB = 1 << 20
WS_Q = 0
WS_K = 16 * MB
WS_V = 32 * MB
WS_O = 48 * MB
WS_KM = 64 * MB
WS_VM = 68 * MB
WS_T = 72 * MB
WS_Z = 76 * MB
WS_F2 = 80 * MB
WS_G2 = 81 * MB
WS_WT = 82 * MB
WS_C2 = 88 * MB
WS_RING = 90 * MB
WS_SIZE = 254 * MB

P_AX, P_WR, P_WI, P_BX, P_MEM0, P_WQ, P_WK, P_WV, P_WO, P_SEG, P_OUT, P_DBG, P_WS = [16 + 2 * i for i in range(13)]


def load_ptrs(A):
    A('s_load_dwordx16 s[16:31], s[0:1], 0')
    A('s_load_dwordx8 s[32:39], s[0:1], 64')
    A('s_load_dwordx2 s[40:41], s[0:1], 96')
    A('s_waitcnt lgkmcnt(0)')


def make_srd(A, d, p, nbytes):
    A('s_mov_b32 %s, %s' % (s(d), s(p)))
    A('s_and_b32 %s, %s, 0xffff' % (s(d + 1), s(p + 1)))
    A('s_mov_b32 %s, 0x%x' % (s(d + 2), nbytes))
    A('s_mov_b32 %s, 0x00020000' % s(d + 3))


def kernel_begin(A, name):
    A.raw('.text')
    A.raw('.globl %s' % name)
    A.raw('.p2align 8')
    A.raw('.type %s,@function' % name)
    A.raw('%s:' % name)


def kernel_desc(name, vgpr=512, accum=256, sgpr=102):
    return '''.section .rodata,"a"
.p2align 6
.amdhsa_kernel %s
  .amdhsa_next_free_vgpr %d
  .amdhsa_next_free_sgpr %d
  .amdhsa_accum_offset %d
  .amdhsa_group_segment_fixed_size 0
  .amdhsa_kernarg_size 104
  .amdhsa_user_sgpr_count 2
  .amdhsa_user_sgpr_kernarg_segment_ptr 1
  .amdhsa_system_sgpr_workgroup_id_x 1
  .amdhsa_float_denorm_mode_32 3
.end_amdhsa_kernel
''' % (name, vgpr, sgpr, accum)
```

```python
from asmlib import v, a, s

NBUF = 4
STAMP = True
BK = 32


class Operand:
    def __init__(self, kind, srd, ld, soff):
        self.kind = kind
        self.srd = srd
        self.ld = ld
        self.soff = soff


class GemmRegs:
    def __init__(self, vbase=8, sbase=60):
        self.vbase = vbase
        self.sbase = sbase


def gemm_tile(A, WM, WN, K, opM, opN, epilogue, vtid, rowmapM=None, rowmapN=None, vb=8, sb=60, lds_base=0, ldsc1=False):
    TM, TN = 64 * WM, 64 * WN
    NS = K // BK
    assert NS >= 5
    bytesM, bytesN = TM * 64, TN * 64
    BUFB = bytesM + bytesN
    ndM, ndN = TM // 64, TN // 64
    ND = ndM + ndN
    r = vb
    vlane = r; r += 1
    vw = r; r += 1
    vt0 = r; r += 1
    vt1 = r; r += 1
    vt2 = r; r += 1
    vdm = r; r += ndM
    vdn = r; r += ndN
    nbM = 2 if opM.kind == 'KC' else WM
    nbN = 2 if opN.kind == 'KC' else WN
    vrbM = r; r += nbM
    vrbN = r; r += nbN
    vraM = r; r += nbM
    vraN = r; r += nbN
    r = (r + 3) // 4 * 4
    fM = [r, r + 4 * WM]; r += 8 * WM
    fN = [r, r + 4 * WN]; r += 8 * WN
    vend = r
    s_rbuf = sb
    s_wbuf = sb + 1
    s_cnt = sb + 2
    s_w = sb + 3
    s_t = sb + 4

    A('v_and_b32 %s, 63, %s' % (v(vlane), v(vtid)))
    A('v_lshrrev_b32 %s, 6, %s' % (v(vw), v(vtid)))
    A('v_readfirstlane_b32 %s, %s' % (s(s_w), v(vw)))

    def dma_offsets(op, T, nd, vd, rowmap):
        if op.kind == 'KC':
            for t in range(nd):
                A('v_lshrrev_b32 %s, 2, %s' % (v(vt0), v(vlane)))
                A('v_mov_b32 %s, %d' % (v(vt1), 16 * nd))
                A('v_mad_u32_u24 %s, %s, %s, %s' % (v(vt0), v(vw), v(vt1), v(vt0)))
                if t:
                    A('v_add_u32 %s, %d, %s' % (v(vt0), 16 * t, v(vt0)))
                if rowmap:
                    rowmap(A, vt0, vt1, vt2)
                A('s_mov_b32 %s, %d' % (s(s_t), op.ld))
                A('v_mul_lo_u32 %s, %s, %s' % (v(vt0), v(vt0), s(s_t)))
                A('v_lshrrev_b32 %s, 4, %s' % (v(vt1), v(vlane)))
                A('v_xor_b32 %s, %s, %s' % (v(vt1), v(vt1), v(vlane)))
                A('v_and_b32 %s, 3, %s' % (v(vt1), v(vt1)))
                A('v_lshl_add_u32 %s, %s, 4, %s' % (v(vd + t), v(vt1), v(vt0)))
        else:
            RB = 2 * T
            cpr = RB // 16
            sh = cpr.bit_length() - 1
            assert (1 << sh) == cpr
            for t in range(nd):
                A('v_mov_b32 %s, %d' % (v(vt1), 64 * nd))
                A('v_mad_u32_u24 %s, %s, %s, %s' % (v(vt0), v(vw), v(vt1), v(vlane)))
                if t:
                    A('v_add_u32 %s, %d, %s' % (v(vt0), 64 * t, v(vt0)))
                A('v_lshrrev_b32 %s, %d, %s' % (v(vt1), sh, v(vt0)))
                A('v_and_b32 %s, %d, %s' % (v(vt0), cpr - 1, v(vt0)))
                A('v_and_b32 %s, 3, %s' % (v(vt2), v(vt1)))
                A('v_lshlrev_b32 %s, 2, %s' % (v(vt2), v(vt2)))
                A('v_xor_b32 %s, %s, %s' % (v(vt0), v(vt0), v(vt2)))
                A('s_mov_b32 %s, %d' % (s(s_t), op.ld))
                A('v_mul_lo_u32 %s, %s, %s' % (v(vt1), v(vt1), s(s_t)))
                A('v_lshl_add_u32 %s, %s, 4, %s' % (v(vd + t), v(vt0), v(vt1)))

    dma_offsets(opM, TM, ndM, vdm, rowmapM)
    dma_offsets(opN, TN, ndN, vdn, rowmapN)

    def read_bases(op, T, W, vrb, opoff, wsel):
        if wsel == 'hi':
            A('v_lshrrev_b32 %s, 1, %s' % (v(vt2), v(vw)))
        else:
            A('v_and_b32 %s, 1, %s' % (v(vt2), v(vw)))
        if op.kind == 'KC':
            for j in range(2):
                A('v_and_b32 %s, 31, %s' % (v(vt0), v(vlane)))
                A('v_lshrrev_b32 %s, 5, %s' % (v(vt1), v(vlane)))
                if j:
                    A('v_add_u32 %s, 2, %s' % (v(vt1), v(vt1)))
                A('v_bfe_u32 %s, %s, 2, 2' % (v(vrb + j), v(vlane)))
                A('v_xor_b32 %s, %s, %s' % (v(vt1), v(vt1), v(vrb + j)))
                A('v_lshlrev_b32 %s, 4, %s' % (v(vt1), v(vt1)))
                A('v_lshl_add_u32 %s, %s, 6, %s' % (v(vt0), v(vt0), v(vt1)))
                A('v_mov_b32 %s, %d' % (v(vt1), 32 * W * 64))
                A('v_mad_u32_u24 %s, %s, %s, %s' % (v(vt0), v(vt2), v(vt1), v(vt0)))
                A('v_add_u32 %s, %d, %s' % (v(vrb + j), opoff + lds_base, v(vt0)))
        else:
            RB = 2 * T
            for t in range(W):
                A('v_bfe_u32 %s, %s, 2, 2' % (v(vt0), v(vlane)))
                A('v_mov_b32 %s, %d' % (v(vt1), W))
                A('v_mad_u32_u24 %s, %s, %s, %d' % (v(vt1), v(vt2), v(vt1), t))
                A('v_xor_b32 %s, %s, %s' % (v(vt1), v(vt1), v(vt0)))
                A('v_lshlrev_b32 %s, 6, %s' % (v(vt1), v(vt1)))
                A('v_lshrrev_b32 %s, 5, %s' % (v(vrb + t), v(vlane)))
                A('v_lshl_add_u32 %s, %s, 3, %s' % (v(vt0), v(vrb + t), v(vt0)))
                A('v_mov_b32 %s, %d' % (v(vrb + t), RB))
                A('v_mad_u32_u24 %s, %s, %s, %s' % (v(vt1), v(vt0), v(vrb + t), v(vt1)))
                A('v_bfe_u32 %s, %s, 4, 1' % (v(vt0), v(vlane)))
                A('v_lshl_add_u32 %s, %s, 5, %s' % (v(vt1), v(vt0), v(vt1)))
                A('v_and_b32 %s, 3, %s' % (v(vt0), v(vlane)))
                A('v_lshl_add_u32 %s, %s, 3, %s' % (v(vt1), v(vt0), v(vt1)))
                A('v_add_u32 %s, %d, %s' % (v(vrb + t), opoff + lds_base, v(vt1)))

    read_bases(opM, TM, WM, vrbM, 0, 'hi')
    read_bases(opN, TN, WN, vrbN, bytesM, 'lo')

    def dma_list():
        L = []
        for t in range(ndM):
            L.append(['s_add_u32 m0, %s, %d' % (s(s_wbuf), t * 1024),
                      'buffer_load_dwordx4 %s, %s, %s offen lds%s' % (v(vdm + t), s(opM.srd, 4), s(opM.soff), ' sc1' if ldsc1 else '')])
        for t in range(ndN):
            L.append(['s_add_u32 m0, %s, %d' % (s(s_t), t * 1024),
                      'buffer_load_dwordx4 %s, %s, %s offen lds%s' % (v(vdn + t), s(opN.srd, 4), s(opN.soff), ' sc1' if ldsc1 else '')])
        return L

    def dma_pre():
        A('s_mul_i32 %s, %s, %d' % (s(s_t), s(s_w), (ndN - ndM) * 1024))
        A('s_add_u32 %s, %s, %s' % (s(s_t), s(s_t), s(s_wbuf)))
        A('s_add_u32 %s, %s, %d' % (s(s_t), s(s_t), bytesM))

    def dma_post():
        A('s_add_u32 %s, %s, %d' % (s(opM.soff), s(opM.soff), 64 if opM.kind == 'KC' else 32 * opM.ld))
        A('s_add_u32 %s, %s, %d' % (s(opN.soff), s(opN.soff), 64 if opN.kind == 'KC' else 32 * opN.ld))
        A('s_add_u32 %s, %s, %d' % (s(s_wbuf), s(s_wbuf), BUFB))
        A('s_cmp_ge_u32 %s, %d' % (s(s_wbuf), lds_base + NBUF * BUFB))
        A('s_cselect_b32 %s, %d, 0' % (s(s_cnt + 3), NBUF * BUFB))
        A('s_sub_u32 %s, %s, %s' % (s(s_wbuf), s(s_wbuf), s(s_cnt + 3)))

    def read_list(j, fs):
        L = []
        def one(op, T, W, vra, f):
            for t in range(W):
                if op.kind == 'KC':
                    L.append('ds_read_b128 %s, %s offset:%d' % (v(f + 4 * t, 4), v(vra + j), t * 2048))
                else:
                    RB = 2 * T
                    L.append('ds_read_b64_tr_b16 %s, %s offset:%d' % (v(f + 4 * t, 2), v(vra + t), (16 * j) * RB))
                    L.append('ds_read_b64_tr_b16 %s, %s offset:%d' % (v(f + 4 * t + 2, 2), v(vra + t), (16 * j + 4) * RB))
        one(opM, TM, WM, vraM, fM[fs])
        one(opN, TN, WN, vraN, fN[fs])
        return L

    def set_read_addrs():
        for i in range(nbM):
            A('v_add_u32 %s, %s, %s' % (v(vraM + i), s(s_rbuf), v(vrbM + i)))
        for i in range(nbN):
            A('v_add_u32 %s, %s, %s' % (v(vraN + i), s(s_rbuf), v(vrbN + i)))
        A('s_add_u32 %s, %s, %d' % (s(s_rbuf), s(s_rbuf), BUFB))
        A('s_cmp_ge_u32 %s, %d' % (s(s_rbuf), NBUF * BUFB))
        A('s_cselect_b32 %s, 0, %s' % (s(s_rbuf), s(s_rbuf)))

    def mfmas(fs, first, extra):
        n = WM * WN
        k = 0
        extra = list(extra)
        per = max(1, -(-len(extra) // n)) if extra else 0
        for mt in range(WM):
            for nt in range(WN):
                acc = a(16 * (mt * WN + nt), 16)
                A('v_mfma_f32_32x32x16_bf16 %s, %s, %s, %s' % (acc, v(fM[fs] + 4 * mt, 4), v(fN[fs] + 4 * nt, 4),
                                                               '0' if first else acc))
                for _ in range(per):
                    if extra:
                        e = extra.pop(0)
                        if isinstance(e, list):
                            for x in e:
                                A(x)
                        else:
                            A(e)
        assert not extra

    A('s_mul_i32 %s, %s, %d' % (s(s_wbuf), s(s_w), ndM * 1024))
    if lds_base:
        A('s_add_u32 %s, %s, %d' % (s(s_wbuf), s(s_wbuf), lds_base))
    A('s_mov_b32 %s, 0' % s(s_rbuf))
    for st in range(NBUF - 1):
        dma_pre()
        for g in dma_list():
            for x in g:
                A(x)
        dma_post()
    set_read_addrs()
    A('s_waitcnt vmcnt(%d)' % (2 * ND))
    A('s_barrier')
    if STAMP: A('s_memtime s[94:95]')
    for x in read_list(0, 0):
        A(x)

    def body(first, do_dma, vm, next_reads):
        A('s_waitcnt lgkmcnt(0)')
        mfmas(0, first, read_list(1, 1))
        if next_reads:
            A('s_waitcnt vmcnt(%d)' % vm)
            A('s_barrier')
            set_read_addrs()
        ex = []
        if do_dma:
            dma_pre()
            ex_d = dma_list()
        else:
            ex_d = []
        ex_r = read_list(0, 0) if next_reads else []
        ex = ex_r + ex_d
        A('s_waitcnt lgkmcnt(0)')
        mfmas(1, False, ex)
        if do_dma:
            dma_post()

    body(True, True, ND, True)
    nloop = NS - 4
    if nloop > 0:
        A('s_mov_b32 %s, %d' % (s(s_cnt), nloop))
        lab = A.label('gl')
        A.put(lab)
        body(False, True, ND, True)
        A('s_sub_u32 %s, %s, 1' % (s(s_cnt), s(s_cnt)))
        A('s_cmp_lg_u32 %s, 0' % s(s_cnt))
        A('s_cbranch_scc1 %s' % lab)
    body(False, False, ND, True)
    body(False, False, 0, True)
    body(False, False, 0, False)
    if STAMP: A('s_memtime s[96:97]')
    epilogue(dict(vlane=vlane, vw=vw, vfree=vt0, vfr=fM[0], vend=vend, s_w=s_w, s_t=s_t, WM=WM, WN=WN))
    return vend


def store_epilogue_bf16(A, srd, s_obase, ldo, rowmap=None, scale=None, sc1=False):
    def ep(c):
        WM, WN = c['WM'], c['WN']
        vlane, vw = c['vlane'], c['vw']
        t0 = c['vfree']
        fr = c['vfr']
        s_t = c['s_t']
        vo = t0 + 3
        for nt in range(WN):
            A('v_and_b32 %s, 1, %s' % (v(t0), v(vw)))
            A('v_mov_b32 %s, %d' % (v(t0 + 1), 32 * WN))
            A('v_and_b32 %s, 31, %s' % (v(t0 + 2), v(vlane)))
            A('v_mad_u32_u24 %s, %s, %s, %s' % (v(t0), v(t0), v(t0 + 1), v(t0 + 2)))
            if nt:
                A('v_add_u32 %s, %d, %s' % (v(t0), 32 * nt, v(t0)))
            if rowmap:
                rowmap(A, t0, t0 + 1, t0 + 2)
            A('s_mov_b32 %s, %d' % (s(s_t), ldo))
            A('v_mul_lo_u32 %s, %s, %s' % (v(t0), v(t0), s(s_t)))
            A('v_lshrrev_b32 %s, 1, %s' % (v(t0 + 1), v(vw)))
            A('v_mov_b32 %s, %d' % (v(t0 + 2), 64 * WM))
            A('v_mad_u32_u24 %s, %s, %s, %s' % (v(t0), v(t0 + 1), v(t0 + 2), v(t0)))
            A('v_lshrrev_b32 %s, 5, %s' % (v(t0 + 1), v(vlane)))
            A('v_lshl_add_u32 %s, %s, 4, %s' % (v(vo + nt), v(t0 + 1), v(t0)))
        k = 0
        for mt in range(WM):
            for nt in range(WN):
                ab = 16 * (mt * WN + nt)
                rb = fr + 24 * (k % 2)
                k += 1
                for i in range(16):
                    A('v_accvgpr_read_b32 %s, %s' % (v(rb + i), a(ab + i)))
                if scale is not None:
                    for i in range(16):
                        A('v_mul_f32 %s, %s, %s' % (v(rb + i), scale, v(rb + i)))
                for i in range(8):
                    A('v_cvt_pk_bf16_f32 %s, %s, %s' % (v(rb + 16 + i), v(rb + 2 * i), v(rb + 2 * i + 1)))
                p = rb + 16
                A('v_permlane32_swap_b32 %s, %s' % (v(p + 0), v(p + 2)))
                A('v_permlane32_swap_b32 %s, %s' % (v(p + 1), v(p + 3)))
                A('v_permlane32_swap_b32 %s, %s' % (v(p + 4), v(p + 6)))
                A('v_permlane32_swap_b32 %s, %s' % (v(p + 5), v(p + 7)))
                m = ' sc1' if sc1 else ''
                A('buffer_store_dwordx4 %s, %s, %s, %s offen offset:%d%s' % (v(p, 4), v(vo + nt), s(srd, 4), s(s_obase), mt * 64, m))
                A('buffer_store_dwordx4 %s, %s, %s, %s offen offset:%d%s' % (v(p + 4, 4), v(vo + nt), s(srd, 4), s(s_obase), mt * 64 + 32, m))
    return ep
```

```python
import struct
from asmlib import Asm, v, a, s
from common import *
from gemm import Operand, gemm_tile, store_epilogue_bf16

C1 = 0.08838834764831845 * 1.4426950408889634
def f32(x):
    return '0x%08x' % struct.unpack('<I', struct.pack('<f', x))[0]


def attn_task(A, s_task, vtid, sc1=False, lds_base=0):
    SC = ' sc1' if sc1 else ''
    A('v_and_b32 v1, 63, %s' % v(vtid))
    A('v_lshrrev_b32 v2, 6, %s' % v(vtid))
    A('v_readfirstlane_b32 s56, v2')
    A('s_lshr_b32 s57, %s, 3' % s(s_task))
    A('s_and_b32 s58, %s, 7' % s(s_task))
    A('s_lshl_b32 s58, s58, 2')
    A('s_add_u32 s58, s58, s56')
    make_srd(A, 52, P_WS, WS_SIZE)
    A('s_lshl_b32 s59, s57, 18')
    A('s_lshl_b32 s60, s58, 8')
    A('s_add_u32 s59, s59, s60')
    A('v_and_b32 v3, 31, v1')
    A('v_lshrrev_b32 v4, 5, v1')
    A('v_lshlrev_b32 v5, 13, v3')
    A('v_lshl_add_u32 v5, v4, 4, v5')
    QF, KF, MF = 16, 48, 80
    A('s_add_u32 s61, s59, 0x%x' % WS_Q)
    for j in range(8):
        A('buffer_load_dwordx4 %s, v5, s[52:55], s61 offen offset:%d%s' % (v(QF + 4 * j, 4), 32 * j, SC))
    A('s_add_u32 s61, s59, 0x%x' % WS_K)
    for j in range(8):
        A('buffer_load_dwordx4 %s, v5, s[52:55], s61 offen offset:%d%s' % (v(KF + 4 * j, 4), 32 * j, SC))
    A('v_and_b32 v6, 7, v1')
    A('v_lshlrev_b32 v6, 8, v6')
    A('v_lshl_add_u32 v6, v4, 4, v6')
    A('s_lshl_b32 s61, s57, 16')
    A('s_lshl_b32 s62, s58, 11')
    A('s_add_u32 s61, s61, s62')
    A('s_add_u32 s62, s61, 0x%x' % WS_KM)
    for j in range(8):
        A('buffer_load_dwordx4 %s, v6, s[52:55], s62 offen offset:%d%s' % (v(MF + 4 * j, 4), 32 * j, SC))
    VM = 112
    A('v_bfe_u32 v7, v1, 4, 1')
    A('v_lshlrev_b32 v7, 5, v7')
    A('v_lshl_add_u32 v7, v4, 4, v7')
    A('v_and_b32 v8, 15, v1')
    A('v_add_u32 v7, v7, v8')
    A('v_lshlrev_b32 v7, 3, v7')
    A('s_add_u32 s62, s61, 0x%x' % WS_VM)
    for et in range(4):
        A('buffer_load_dwordx2 %s, v7, s[52:55], s62 offen offset:%d%s' % (v(VM + 2 * et, 2), 512 * et, SC))
    A('s_lshl_b32 s63, s56, 13')
    if lds_base:
        A('s_add_u32 s63, s63, %d' % lds_base)
    A('v_lshrrev_b32 v8, 4, v1')
    A('v_and_b32 v9, 15, v1')
    A('v_lshlrev_b32 v10, 2, v8')
    A('v_xor_b32 v9, v9, v10')
    A('v_lshlrev_b32 v9, 4, v9')
    A('v_lshl_add_u32 v9, v8, 13, v9')
    A('s_add_u32 s61, s59, 0x%x' % WS_V)
    for i in range(8):
        A('s_add_u32 m0, s63, %d' % (i * 1024))
        A('s_add_u32 s62, s61, %d' % (i * 4 * 8192))
        A('buffer_load_dwordx4 v9, s[52:55], s62 offen lds%s' % SC)
    A('v_bfe_u32 v8, v1, 2, 2')
    A('v_lshl_add_u32 v10, v4, 2, v8')
    A('v_lshlrev_b32 v10, 8, v10')
    A('v_lshl_add_u32 v10, v8, 6, v10')
    A('v_bfe_u32 v11, v1, 4, 1')
    A('v_lshl_add_u32 v10, v11, 5, v10')
    A('v_and_b32 v11, 3, v1')
    A('v_lshl_add_u32 v10, v11, 3, v10')
    A('v_add_u32 v10, s63, v10')
    SX, SM = 128, 144
    A('s_waitcnt vmcnt(20)')
    for j in range(8):
        A('v_mfma_f32_32x32x16_bf16 %s, %s, %s, %s' % (v(SX, 16), v(KF + 4 * j, 4), v(QF + 4 * j, 4), '0' if j == 0 else v(SX, 16)))
    A('s_waitcnt vmcnt(12)')
    for j in range(8):
        A('v_mfma_f32_32x32x16_bf16 %s, %s, %s, %s' % (v(SM, 16), v(MF + 4 * j, 4), v(QF + 4 * j, 4), '0' if j == 0 else v(SM, 16)))
    A('s_waitcnt vmcnt(0)')
    VF = 16
    VF = 160
    for et in range(4):
        A('v_xor_b32 v11, %d, v10' % (et << 6))
        for ks in range(2):
            r = VF + 4 * (et * 2 + ks)
            A('ds_read_b64_tr_b16 %s, v11 offset:%d' % (v(r, 2), ks * 4096))
            A('ds_read_b64_tr_b16 %s, v11 offset:%d' % (v(r + 2, 2), ks * 4096 + 2048))
    A('v_lshlrev_b32 v12, 2, v4')
    A('v_sub_u32 v12, v3, v12')
    A('v_mov_b32 v13, 0xff7fffff')
    for r in range(16):
        A('v_cmp_le_i32 vcc, %d, v12' % (8 * (r >> 2) + (r & 3)))
        A('v_cndmask_b32 %s, v13, %s, vcc' % (v(SX + r), v(SX + r)))
    A('v_max3_f32 v14, %s, %s, %s' % (v(SM), v(SM + 1), v(SM + 2)))
    A('v_max_f32 v14, v14, %s' % v(SM + 3))
    for r in range(0, 16, 2):
        A('v_max3_f32 v14, v14, %s, %s' % (v(SX + r), v(SX + r + 1)))
    A('v_mov_b32 v15, v14')
    A('v_permlane32_swap_b32 v14, v15')
    A('v_max_f32 v14, v14, v15')
    A('s_mov_b32 s62, %s' % f32(C1))
    A('v_mul_f32 v14, s62, v14')
    regs = [SX + r for r in range(16)] + [SM + r for r in range(4)]
    for r in regs:
        A('v_fma_f32 %s, %s, s62, -v14' % (v(r), v(r)))
    for r in regs:
        A('v_exp_f32 %s, %s' % (v(r), v(r)))
    A('v_add_f32 v14, %s, %s' % (v(regs[0]), v(regs[1])))
    for r in regs[2:]:
        A('v_add_f32 v14, v14, %s' % v(r))
    A('v_mov_b32 v15, v14')
    A('v_permlane32_swap_b32 v14, v15')
    A('v_add_f32 v14, v14, v15')
    A('v_rcp_f32 v14, v14')
    PF = 16
    for i in range(8):
        A('v_cvt_pk_bf16_f32 %s, %s, %s' % (v(PF + i), v(SX + 2 * i), v(SX + 2 * i + 1)))
    A('v_cvt_pk_bf16_f32 %s, %s, %s' % (v(PF + 8), v(SM), v(SM + 1)))
    A('v_cvt_pk_bf16_f32 %s, %s, %s' % (v(PF + 9), v(SM + 2), v(SM + 3)))
    OA = 32
    A('s_waitcnt lgkmcnt(0)')
    for et in range(4):
        o = v(OA + 16 * et, 16)
        A('v_mfma_f32_32x32x16_bf16 %s, %s, %s, 0' % (o, v(VF + 8 * et, 4), v(PF, 4)))
        A('v_mfma_f32_32x32x16_bf16 %s, %s, %s, %s' % (o, v(VF + 8 * et + 4, 4), v(PF + 4, 4), o))
        A('v_mfma_f32_32x32x8_bf16 %s, %s, %s, %s' % (o, v(VM + 2 * et, 2), v(PF + 8, 2), o))
    A('s_add_u32 s61, s59, 0x%x' % WS_O)
    for et in range(4):
        b = OA + 16 * et
        p = 96 + 8 * (et & 1)
        for i in range(16):
            A('v_mul_f32 %s, %s, v14' % (v(b + i), v(b + i)))
        for i in range(8):
            A('v_cvt_pk_bf16_f32 %s, %s, %s' % (v(p + i), v(b + 2 * i), v(b + 2 * i + 1)))
        A('v_permlane32_swap_b32 %s, %s' % (v(p), v(p + 2)))
        A('v_permlane32_swap_b32 %s, %s' % (v(p + 1), v(p + 3)))
        A('v_permlane32_swap_b32 %s, %s' % (v(p + 4), v(p + 6)))
        A('v_permlane32_swap_b32 %s, %s' % (v(p + 5), v(p + 7)))
        A('buffer_store_dwordx4 %s, v5, s[52:55], s61 offen offset:%d%s' % (v(p, 4), et * 64, SC))
        A('buffer_store_dwordx4 %s, v5, s[52:55], s61 offen offset:%d%s' % (v(p + 4, 4), et * 64 + 32, SC))


def oproj_tile(A, s_tile, vtid, sc1=False):
    A('s_mul_i32 s57, %s, 52429' % s(s_tile))
    A('s_lshr_b32 s57, s57, 18')
    A('s_mul_i32 s56, s57, 5')
    A('s_sub_u32 s56, %s, s56' % s(s_tile))
    make_srd(A, 44, P_WO, 4096 * 1280)
    make_srd(A, 48, P_OUT, 2048 * 2560)
    make_srd(A, 52, P_WS, WS_SIZE)
    A('s_lshl_b32 s66, s56, 8')
    A('s_lshl_b32 s67, s57, 19')
    A('s_add_u32 s67, s67, 0x%x' % WS_O)
    A('s_mul_i32 s68, s57, %d' % (64 * 2560))
    A('s_add_u32 s68, s68, s66')
    A('s_add_u32 s68, s68, 1280')
    opM = Operand('IC', 44, 1280, 66)
    opN = Operand('KC', 52, 8192, 67)
    gemm_tile(A, 2, 1, 4096, opM, opN, store_epilogue_bf16(A, 48, 68, 2560), vtid, ldsc1=sc1)
```

```python
import os, struct
from asmlib import Asm, v, a, s
from common import *

R_MA = WS_RING
R_MB = WS_RING + 65536
R_VR = WS_RING + 131072
R_PART = WS_RING + 524288
RING_BYTES = 524288 + 32 * 32 * 320

L_M = 0
L_Q = 10240
L_K = 12288
L_R = 14336
L_KX = 16384
L_VX = L_KX + 16384
L_WO = L_VX + 16384
L_END = L_WO + 98304
L_STAGE = L_KX

SPIN_MAX = 3000000
C1 = 0.08838834764831845 * 1.4426950408889634


def f32(x):
    return '0x%08x' % struct.unpack('<I', struct.pack('<f', x))[0]


S_WS, S_W = 44, 48
S_H, S_WV, S_STEP, S_T0, S_T1, S_SPIN, S_FAST, S_TAG = range(52, 60)
S_HALF, S_GLO, S_L40, S_C8, S_PUB = 60, 62, 64, 66, 68
S_T2, S_T3 = 70, 71
S_E = 72
S_E3 = 88
S_ST = 90


def wq_reg(t, i):
    return a((t * 10 + i) * 8, 8)


def wk_reg(t, i):
    n = t * 10 + i
    return a(160 + n * 8, 8) if n < 12 else v(192 + (n - 12) * 8, 8)


def sub(regstr, off, n):
    kind = regstr[0]
    base = int(regstr[2:regstr.index(':')])
    return '%s[%d:%d]' % (kind, base + off, base + off + n - 1)


def weave(A, main, fill, per=1, start=0):
    fill = list(fill)
    for i, m in enumerate(main):
        A(m)
        if i >= start:
            for _ in range(per):
                if fill:
                    A(fill.pop(0))
    for f in fill:
        A(f)


def lane_consts(A, vlane):
    A('v_and_b32 v2, 8, %s' % v(vlane))
    A('v_cmp_ne_u32 %s, 0, v2' % s(S_HALF, 2))
    A('v_cmp_gt_u32 %s, 32, %s' % (s(S_GLO, 2), v(vlane)))
    A('v_cmp_gt_u32 %s, 40, %s' % (s(S_L40, 2), v(vlane)))
    A('v_cmp_eq_u32 %s, 0, v2' % s(S_C8, 2))
    A('s_cmp_eq_u32 %s, 1' % s(S_WV))
    A('s_cselect_b64 %s, -1, 0' % s(S_E3, 2))


def load_w_frags(A, srd_ld, soff_base_sgpr, regfn, ntiles, vlane, vt, wave_col_bytes):
    A('v_lshrrev_b32 %s, 4, %s' % (v(vt), v(vlane)))
    A('s_lshl_b32 %s, %s, 5' % (s(S_T0), s(S_WV)))
    A('v_add_u32 %s, %s, %s' % (v(vt), s(S_T0), v(vt)))
    A('s_mov_b32 %s, %d' % (s(S_T1), srd_ld))
    A('v_mul_lo_u32 %s, %s, %s' % (v(vt), v(vt), s(S_T1)))
    A('v_and_b32 %s, 15, %s' % (v(vt + 1), v(vlane)))
    A('v_lshl_add_u32 %s, %s, 4, %s' % (v(vt), v(vt + 1), v(vt)))
    A('v_lshrrev_b32 %s, 5, %s' % (v(vt + 1), v(vlane)))
    A('v_lshlrev_b32 %s, 4, %s' % (v(vt + 1), v(vt + 1)))
    A('v_bfe_u32 %s, %s, 4, 1' % (v(vt + 2), v(vlane)))
    A('v_lshl_add_u32 %s, %s, 2, %s' % (v(vt + 1), v(vt + 2), v(vt + 1)))
    A('v_bfe_u32 %s, %s, 2, 1' % (v(vt + 2), v(vlane)))
    A('v_add_u32 %s, %s, %s' % (v(vt + 1), v(vt + 2), v(vt + 1)))
    A('v_bfe_u32 %s, %s, 3, 1' % (v(vt + 2), v(vlane)))
    A('v_lshl_add_u32 %s, %s, 3, %s' % (v(vt + 1), v(vt + 2), v(vt + 1)))
    A('v_lshlrev_b32 %s, 8, %s' % (v(vt + 1), v(vt + 1)))
    A('v_and_b32 %s, 3, %s' % (v(vt + 2), v(vlane)))
    A('v_lshl_add_u32 %s, %s, 3, %s' % (v(vt + 1), v(vt + 2), v(vt + 1)))
    A('s_mul_i32 %s, %s, %d' % (s(S_T0), s(S_WV), wave_col_bytes))
    A('s_add_u32 %s, %s, %d' % (s(S_T0), s(S_T0), L_STAGE))
    A('v_add_u32 %s, %s, %s' % (v(vt + 1), s(S_T0), v(vt + 1)))
    for ch in range(5):
        A('s_barrier')
        A('s_lshl_b32 %s, %s, 13' % (s(S_T0), s(S_WV)))
        A('s_add_u32 %s, %s, %d' % (s(S_T0), s(S_T0), L_STAGE))
        for i in range(8):
            A('s_add_u32 m0, %s, %d' % (s(S_T0), i * 1024))
            A('s_add_u32 %s, %s, %d' % (s(S_T1), s(soff_base_sgpr), (ch * 128 + i * 4) * srd_ld))
            A('buffer_load_dwordx4 %s, %s, %s offen lds' % (v(vt), s(S_W, 4), s(S_T1)))
        A('s_waitcnt vmcnt(0)')
        A('s_barrier')
        for kk in range(2):
            for t in range(ntiles):
                R = regfn(t, ch * 2 + kk)
                for q in range(4):
                    rowoff = kk * 64 + (q & 1) * 2 + (q >> 1) * 32
                    A('ds_read_b64_tr_b16 %s, %s offset:%d' % (sub(R, 2 * q, 2), v(vt + 1), rowoff * 256 + t * 32))
            A('s_waitcnt lgkmcnt(0)')


def spin_retry(A, lab_retry, abort):
    A('s_add_u32 %s, %s, 1' % (s(S_SPIN), s(S_SPIN)))
    A('s_cmp_lt_u32 %s, %d' % (s(S_SPIN), SPIN_MAX))
    A('s_cbranch_scc1 %s' % lab_retry)
    A('s_branch %s' % abort)


def st2(A, text):
    l1, l2 = A.label('sl'), A.label('sd')
    A('s_cmp_eq_u32 %s, 0' % s(S_FAST))
    A('s_cbranch_scc1 %s' % l1)
    for t in text:
        A(t)
    A('s_branch %s' % l2)
    A.put(l1)
    for t in text:
        A(t + ' sc1')
    A.put(l2)


def m_poll_and_share(A, ring_base, vL16, R, vtmp, abort):
    skip = A.label('nomp')
    A('s_cmp_ge_u32 %s, 3' % s(S_WV))
    A('s_cbranch_scc1 %s' % skip)
    A('s_mul_i32 %s, %s, 7' % (s(S_T1), s(S_WV)))
    A('s_lshr_b32 %s, %s, 1' % (s(S_T1), s(S_T1)))
    A('s_lshl_b32 %s, %s, 10' % (s(S_T1), s(S_T1)))
    A('s_and_b32 %s, %s, 3' % (s(S_T0), s(S_STEP)))
    A('s_mul_i32 %s, %s, 10240' % (s(S_T0), s(S_T0)))
    A('s_add_u32 %s, %s, %s' % (s(S_T0), s(S_T0), s(S_T1)))
    A('s_add_u32 %s, %s, 0x%x' % (s(S_T0), s(S_T0), ring_base))
    A('s_mov_b32 %s, 0' % s(S_SPIN))
    for i in range(3):
        A('s_mov_b64 %s, -1' % s(S_E + 2 * i, 2))
    A('s_mov_b64 %s, %s' % (s(S_E + 6, 2), s(S_E3, 2)))
    lp = A.label('mp')
    A.put(lp)
    for i in range(4):
        A('s_mov_b64 exec, %s' % s(S_E + 2 * i, 2))
        sk = A.label('mk')
        A('s_cbranch_execz %s' % sk)
        A('buffer_load_dwordx4 %s, %s, %s, %s offen offset:%d sc1' % (v(R + 4 * i, 4), v(vL16), s(S_WS, 4), s(S_T0), 1024 * i))
        A.put(sk)
    A('s_mov_b64 exec, -1')
    A('s_waitcnt vmcnt(0)')
    for i in range(4):
        A('v_max3_u32 %s, %s, %s, %s' % (v(vtmp + i), v(R + 4 * i), v(R + 4 * i + 1), v(R + 4 * i + 2)))
        A('v_max_u32 %s, %s, %s' % (v(vtmp + i), v(vtmp + i), v(R + 4 * i + 3)))
    for i in range(4):
        A('v_cmp_eq_u32 %s, -1, %s' % (s(S_E + 2 * i, 2), v(vtmp + i)))
    A('s_and_b64 %s, %s, %s' % (s(S_E + 6, 2), s(S_E + 6, 2), s(S_E3, 2)))
    A('s_or_b64 vcc, %s, %s' % (s(S_E, 2), s(S_E + 2, 2)))
    A('s_or_b64 vcc, vcc, %s' % s(S_E + 4, 2))
    A('s_or_b64 vcc, vcc, %s' % s(S_E + 6, 2))
    ok = A.label('ok')
    A('s_cbranch_scc0 %s' % ok)
    spin_retry(A, lp, abort)
    A.put(ok)
    A('v_add_u32 %s, %s, %s' % (v(vtmp), s(S_T1), v(vL16)))
    for i in range(3):
        A('ds_write_b128 %s, %s offset:%d' % (v(vtmp), v(R + 4 * i, 4), 1024 * i))
    A('s_mov_b64 exec, %s' % s(S_E3, 2))
    A('ds_write_b128 %s, %s offset:3072' % (v(vtmp), v(R + 12, 4)))
    A('s_mov_b64 exec, -1')
    A('s_waitcnt lgkmcnt(0)')
    A.put(skip)


def h_cu(A, abort, done, kv_sc1=False, stamps=False, kv_wait=None):
    vlane = 1
    (vIdx, vL16, vQKw, vQKr, vKx, vVx, vVp, vGat, vGat2, vMst, vKst, vDk, vDv, vRinv, vWoL, vRw) = range(3, 19)
    vPst = 19
    SEL = 24
    PX = 28
    PML, PMH = 32, 34
    vT = 36
    MR, QF, ACCK, ACCQ, KXF, VMF = 40, 40, 64, 72, 80, 112
    SCM, SCX = 64, 72
    OA, OF, WA, WL, G, GD = 40, 72, 80, 40, 40, 56
    WOR = 128

    def kf(j):
        return 56 + 4 * j if j < 2 else 120 + 4 * (j - 2)

    SP = os.environ.get('STAMPSET', 'top,B1,ox,om,W,end').split(',')
    def stamp(name):
        if stamps and name in SP:
            A('s_memtime %s' % s(4 + 2 * SP.index(name), 2))

    A('v_and_b32 %s, 63, v0' % v(vlane))
    A('v_lshrrev_b32 v2, 6, v0')
    A('v_readfirstlane_b32 %s, v2' % s(S_WV))
    lane_consts(A, vlane)
    make_srd(A, S_WS, P_WS, WS_SIZE)
    A('s_lshl_b32 %s, %s, 8' % (s(S_T2), s(S_H)))
    make_srd(A, S_W, P_WQ, 640 * 8192)
    load_w_frags(A, 8192, S_T2, wq_reg, 2, vlane, vT, 64)
    make_srd(A, S_W, P_WK, 640 * 8192)
    load_w_frags(A, 8192, S_T2, wk_reg, 2, vlane, vT, 64)
    make_srd(A, S_W, P_WO, 32 * 128 * 1280)
    A('s_mul_i32 %s, %s, %d' % (s(S_T2), s(S_H), 128 * 1280))
    vt = vT
    A('v_lshrrev_b32 %s, 4, %s' % (v(vt), v(vlane)))
    A('s_lshl_b32 %s, %s, 5' % (s(S_T0), s(S_WV)))
    A('v_add_u32 %s, %s, %s' % (v(vt), s(S_T0), v(vt)))
    A('s_mov_b32 %s, 1280' % s(S_T1))
    A('v_mul_lo_u32 %s, %s, %s' % (v(vt), v(vt), s(S_T1)))
    A('v_and_b32 %s, 15, %s' % (v(vt + 1), v(vlane)))
    A('v_lshl_add_u32 %s, %s, 4, %s' % (v(vt), v(vt + 1), v(vt)))
    A('v_bfe_u32 %s, %s, 4, 1' % (v(vt + 1), v(vlane)))
    A('v_lshlrev_b32 %s, 4, %s' % (v(vt + 1), v(vt + 1)))
    A('v_lshrrev_b32 %s, 5, %s' % (v(vt + 2), v(vlane)))
    A('v_lshl_add_u32 %s, %s, 2, %s' % (v(vt + 1), v(vt + 2), v(vt + 1)))
    A('v_bfe_u32 %s, %s, 2, 1' % (v(vt + 2), v(vlane)))
    A('v_add_u32 %s, %s, %s' % (v(vt + 1), v(vt + 2), v(vt + 1)))
    A('v_bfe_u32 %s, %s, 3, 1' % (v(vt + 2), v(vlane)))
    A('v_lshl_add_u32 %s, %s, 5, %s' % (v(vt + 1), v(vt + 2), v(vt + 1)))
    A('v_lshlrev_b32 %s, 8, %s' % (v(vt + 1), v(vt + 1)))
    A('v_and_b32 %s, 3, %s' % (v(vt + 2), v(vlane)))
    A('v_lshl_add_u32 %s, %s, 3, %s' % (v(vt + 1), v(vt + 2), v(vt + 1)))
    A('v_add_u32 %s, %d, %s' % (v(vt + 1), L_STAGE, v(vt + 1)))
    A('s_mul_i32 %s, %s, 24576' % (s(S_T0), s(S_WV)))
    A('s_add_u32 %s, %s, %d' % (s(S_T0), s(S_T0), L_WO))
    A('v_lshlrev_b32 %s, 4, %s' % (v(vWoL), v(vlane)))
    A('v_add_u32 %s, %s, %s' % (v(vWoL), s(S_T0), v(vWoL)))
    for p in range(5):
        A('s_barrier')
        A('s_lshl_b32 %s, %s, 13' % (s(S_T0), s(S_WV)))
        A('s_add_u32 %s, %s, %d' % (s(S_T0), s(S_T0), L_STAGE))
        for i in range(8):
            A('s_add_u32 m0, %s, %d' % (s(S_T0), i * 1024))
            A('s_add_u32 %s, %s, %d' % (s(S_T1), s(S_T2), i * 4 * 1280 + p * 256))
            A('buffer_load_dwordx4 %s, %s, %s offen lds' % (v(vt), s(S_W, 4), s(S_T1)))
        A('s_waitcnt vmcnt(0)')
        A('s_barrier')
        endp = A.label('wo')
        for w in range(4):
            tiles = [T for T in range(8 * p, 8 * p + 8) if T // 10 == w]
            if not tiles:
                continue
            nxt = A.label('won')
            A('s_cmp_lg_u32 %s, %d' % (s(S_WV), w))
            A('s_cbranch_scc1 %s' % nxt)
            for T in tiles:
                t = T % 10
                for kk in range(2):
                    R = v(WOR + (t * 2 + kk) * 8, 8) if t < 4 else v(40, 8)
                    for q in range(4):
                        rowoff = kk * 64 + (q & 1) * 2 + (q >> 1) * 8
                        A('ds_read_b64_tr_b16 %s, %s offset:%d' % (sub(R, 2 * q, 2), v(vt + 1), rowoff * 256 + (T - 8 * p) * 32))
                    if t >= 4:
                        A('s_waitcnt lgkmcnt(0)')
                        o = ((t - 4) * 2 + kk) * 2048
                        A('ds_write_b128 %s, v[40:43] offset:%d' % (v(vWoL), o))
                        A('ds_write_b128 %s, v[44:47] offset:%d' % (v(vWoL), o + 1024))
            A('s_waitcnt lgkmcnt(0)')
            A('s_branch %s' % endp)
            A.put(nxt)
        A.put(endp)
    A('s_barrier')
    A('v_mov_b32 %s, 0x4444' % v(vIdx))
    A('v_mov_b32 v2, 0xeeee')
    A('v_cndmask_b32 %s, %s, v2, %s' % (v(vIdx), v(vIdx), s(S_HALF, 2)))
    A('v_lshlrev_b32 %s, 4, %s' % (v(vL16), v(vlane)))
    A('v_lshrrev_b32 v2, 5, %s' % v(vlane))
    A('v_lshlrev_b32 v2, 4, v2')
    A('v_and_b32 %s, 15, %s' % (v(vT), v(vlane)))
    A('v_add_u32 v2, v2, %s' % v(vT))
    A('s_lshl_b32 %s, %s, 5' % (s(S_T0), s(S_WV)))
    A('v_add_u32 v2, %s, v2' % s(S_T0))
    A('v_lshlrev_b32 v2, 4, v2')
    A('v_bfe_u32 %s, %s, 4, 1' % (v(vT), v(vlane)))
    A('v_lshl_add_u32 v2, %s, 3, v2' % v(vT))
    A('v_add_u32 %s, %d, v2' % (v(vQKw), L_Q))
    A('v_lshrrev_b32 v2, 4, %s' % v(vlane))
    A('v_lshlrev_b32 v2, 3, v2')
    A('v_bfe_u32 %s, %s, 2, 2' % (v(vT), v(vlane)))
    A('v_add_u32 v2, v2, %s' % v(vT))
    A('v_lshlrev_b32 v2, 4, v2')
    A('v_and_b32 %s, 1, %s' % (v(vT), v(vlane)))
    A('v_lshl_add_u32 v2, %s, 3, v2' % v(vT))
    A('v_add_u32 %s, %d, v2' % (v(vQKr), L_Q))
    A('v_and_b32 v2, 15, %s' % v(vlane))
    A('v_lshrrev_b32 %s, 4, %s' % (v(vT), v(vlane)))
    A('v_xor_b32 %s, %s, v2' % (v(vT), v(vT)))
    A('v_lshlrev_b32 %s, 4, %s' % (v(vT), v(vT)))
    A('v_lshl_add_u32 %s, v2, 8, %s' % (v(vKx), v(vT)))
    A('v_add_u32 %s, %d, %s' % (v(vKx), L_KX, v(vKx)))
    A('v_lshrrev_b32 v2, 4, %s' % v(vlane))
    A('v_lshlrev_b32 v2, 2, v2')
    A('v_bfe_u32 %s, %s, 2, 2' % (v(vT), v(vlane)))
    A('v_add_u32 v2, v2, %s' % v(vT))
    A('v_and_b32 %s, 7, v2' % v(vT))
    A('v_lshlrev_b32 %s, 5, %s' % (v(vT), v(vT)))
    A('v_lshl_add_u32 v2, v2, 8, %s' % v(vT))
    A('v_and_b32 %s, 3, %s' % (v(vT), v(vlane)))
    A('v_lshl_add_u32 %s, %s, 3, v2' % (v(vVx), v(vT)))
    A('v_add_u32 %s, %d, %s' % (v(vVx), L_VX, v(vVx)))
    A('v_lshlrev_b32 %s, 3, %s' % (v(vVp), v(vlane)))
    A('v_and_b32 v2, 15, %s' % v(vlane))
    A('s_cmp_eq_u32 %s, 2' % s(S_WV))
    A('s_cselect_b32 %s, 7, 15' % s(S_T0))
    A('v_and_b32 v2, %s, v2' % s(S_T0))
    A('s_lshl_b32 %s, %s, 4' % (s(S_T0), s(S_WV)))
    A('v_add_u32 v2, %s, v2' % s(S_T0))
    A('v_lshlrev_b32 v2, 3, v2')
    A('v_lshrrev_b32 %s, 4, %s' % (v(vT), v(vlane)))
    A('v_mul_u32_u24 %s, 640, %s' % (v(vT), v(vT)))
    A('v_add_u32 v2, v2, %s' % v(vT))
    A('s_mul_i32 %s, %s, 10240' % (s(S_T0), s(S_H)))
    A('s_add_u32 %s, %s, 0x%x' % (s(S_T0), s(S_T0), R_PART))
    A('v_add_u32 %s, %s, v2' % (v(vGat), s(S_T0)))
    A('v_add_u32 %s, 5120, %s' % (v(vGat2), v(vGat)))
    A('v_lshrrev_b32 v2, 4, %s' % v(vlane))
    A('v_lshlrev_b32 v2, 2, v2')
    A('v_and_b32 %s, 3, %s' % (v(vT), v(vlane)))
    A('v_add_u32 v2, v2, %s' % v(vT))
    A('s_lshl_b32 %s, %s, 4' % (s(S_T0), s(S_WV)))
    A('v_add_u32 v2, %s, v2' % s(S_T0))
    A('s_cmp_eq_u32 %s, 3' % s(S_WV))
    A('s_cselect_b64 vcc, -1, 0')
    A('v_cndmask_b32 v2, v2, %s, vcc' % v(vlane))
    A('v_lshlrev_b32 %s, 3, v2' % v(vRw))
    A('v_add_u32 %s, %d, %s' % (v(vRw), L_R, v(vRw)))
    A('v_cmp_gt_u32 %s, 40, v2' % s(S_PUB, 2))
    A('v_and_b32 %s, 12, %s' % (v(vT), v(vlane)))
    A('v_cmp_eq_u32 %s, 0, %s' % (s(S_E, 2), v(vT)))
    A('s_or_b64 vcc, vcc, %s' % s(S_E, 2))
    A('s_and_b64 %s, %s, vcc' % (s(S_PUB, 2), s(S_PUB, 2)))
    A('v_lshrrev_b32 %s, 2, v2' % v(vT))
    A('v_cmp_le_u32 vcc, 5, %s' % v(vT))
    A('v_cndmask_b32 %s, 0, 1, vcc' % v(vT + 1))
    A('v_mul_u32_u24 %s, 5, %s' % (v(vT + 2), v(vT + 1)))
    A('v_sub_u32 %s, %s, %s' % (v(vT), v(vT), v(vT + 2)))
    A('v_lshlrev_b32 %s, 2, %s' % (v(vT), v(vT)))
    A('s_mul_i32 %s, %s, 20' % (s(S_T0), s(S_H)))
    A('v_add_u32 %s, %s, %s' % (v(vT), s(S_T0), v(vT)))
    A('v_and_b32 v2, 3, v2')
    A('v_lshl_add_u32 v2, %s, 2, v2' % v(vT + 1))
    A('v_lshrrev_b32 %s, 3, %s' % (v(vT + 1), v(vT)))
    A('v_lshlrev_b32 %s, 7, %s' % (v(vT + 1), v(vT + 1)))
    A('v_lshl_add_u32 v2, v2, 4, %s' % v(vT + 1))
    A('v_and_b32 %s, 4, %s' % (v(vT), v(vT)))
    A('v_lshl_add_u32 %s, %s, 1, v2' % (v(vMst), v(vT)))
    A('v_and_b32 v2, 15, %s' % v(vlane))
    A('v_mov_b32 %s, 0x3f80' % v(vT))
    A('v_mov_b32 %s, 0x3f800000' % v(vT + 1))
    A('v_cmp_eq_u32 vcc, 0, v2')
    A('v_cndmask_b32 %s, 0, %s, vcc' % (v(SEL), v(vT)))
    A('v_cmp_eq_u32 vcc, 1, v2')
    A('v_cndmask_b32 %s, %s, %s, vcc' % (v(SEL), v(SEL), v(vT + 1)))
    A('v_cmp_eq_u32 vcc, 2, v2')
    A('v_cndmask_b32 %s, 0, %s, vcc' % (v(SEL + 1), v(vT)))
    A('v_cmp_eq_u32 vcc, 3, v2')
    A('v_cndmask_b32 %s, %s, %s, vcc' % (v(SEL + 1), v(SEL + 1), v(vT + 1)))
    A('v_mov_b32 %s, %s' % (v(SEL + 2), v(SEL)))
    A('v_mov_b32 %s, %s' % (v(SEL + 3), v(SEL + 1)))
    A('v_and_b32 v2, 15, %s' % v(vlane))
    A('v_lshlrev_b32 v2, 8, v2')
    A('v_lshrrev_b32 %s, 4, %s' % (v(vT), v(vlane)))
    A('v_lshl_add_u32 v2, %s, 4, v2' % v(vT))
    A('s_lshl_b32 %s, %s, 11' % (s(S_T0), s(S_H)))
    A('s_add_u32 %s, %s, 0x%x' % (s(S_T0), s(S_T0), WS_KM))
    A('v_add_u32 %s, %s, v2' % (v(vKst), s(S_T0)))
    A('v_lshrrev_b32 v2, 4, %s' % v(vlane))
    A('v_and_b32 %s, 15, %s' % (v(vT), v(vlane)))
    A('v_xor_b32 %s, %s, v2' % (v(vT + 1), v(vT)))
    A('v_lshlrev_b32 %s, 4, %s' % (v(vT + 1), v(vT + 1)))
    A('v_lshl_add_u32 %s, v2, 13, %s' % (v(vDk), v(vT + 1)))
    A('v_lshlrev_b32 %s, 1, v2' % v(vT + 1))
    A('v_xor_b32 %s, %s, %s' % (v(vT + 1), v(vT), v(vT + 1)))
    A('v_lshlrev_b32 %s, 4, %s' % (v(vT + 1), v(vT + 1)))
    A('v_lshl_add_u32 %s, v2, 13, %s' % (v(vDv), v(vT + 1)))
    for i in range(5):
        A('v_lshrrev_b32 v2, 5, %s' % v(vlane))
        A('v_lshlrev_b32 v2, 4, v2')
        A('v_and_b32 %s, 15, %s' % (v(vT), v(vlane)))
        A('v_add_u32 v2, v2, %s' % v(vT))
        A('s_mul_i32 %s, %s, 160' % (s(S_T0), s(S_WV)))
        A('s_add_u32 %s, %s, %d' % (s(S_T0), s(S_T0), 32 * i))
        A('v_add_u32 v2, %s, v2' % s(S_T0))
        A('v_mul_u32_u24 %s, 3277, v2' % v(vT))
        A('v_lshrrev_b32 %s, 16, %s' % (v(vT), v(vT)))
        A('v_mul_u32_u24 %s, 20, %s' % (v(vT + 1), v(vT)))
        A('v_sub_u32 v2, v2, %s' % v(vT + 1))
        A('v_mul_u32_u24 %s, 1280, %s' % (v(vT), v(vT)))
        A('v_add_u32 v2, v2, %s' % v(vT))
        A('v_bfe_u32 %s, %s, 4, 1' % (v(vT), v(vlane)))
        A('v_mul_u32_u24 %s, 20, %s' % (v(vT), v(vT)))
        A('v_add_u32 v2, v2, %s' % v(vT))
        A('v_lshlrev_b32 v2, 3, v2')
        A('s_mul_i32 %s, %s, 320' % (s(S_T0), s(S_H)))
        A('s_add_u32 %s, %s, 0x%x' % (s(S_T0), s(S_T0), R_PART))
        A('v_add_u32 %s, %s, v2' % (v(vPst + i), s(S_T0)))

    def kv_dma(which, seg_sgpr, buf_sgpr):
        m = ' sc1' if kv_sc1 else ''
        A('s_lshl_b32 %s, %s, 18' % (s(S_T0), s(seg_sgpr)))
        A('s_lshl_b32 %s, %s, 8' % (s(S_T1), s(S_H)))
        A('s_add_u32 %s, %s, %s' % (s(S_T0), s(S_T0), s(S_T1)))
        A('s_lshl_b32 %s, %s, 13' % (s(S_T1), s(buf_sgpr)))
        for i in range(8):
            if which == 'K':
                A('v_xor_b32 %s, %d, %s' % (v(vT + (i & 1)), (i & 3) << 6, v(vDk)))
                A('s_add_u32 m0, %s, %d' % (s(S_T1), L_KX + i * 1024))
                A('s_add_u32 %s, %s, 0x%x' % (s(S_T3), s(S_T0), WS_K + i * 4 * 8192))
            else:
                A('v_xor_b32 %s, %d, %s' % (v(vT + (i & 1)), (i & 1) << 7, v(vDv)))
                A('s_add_u32 m0, %s, %d' % (s(S_T1), L_VX + i * 1024))
                A('s_add_u32 %s, %s, 0x%x' % (s(S_T3), s(S_T0), WS_V + i * 4 * 8192))
            A('buffer_load_dwordx4 %s, %s, %s offen lds%s' % (v(vT + (i & 1)), s(S_WS, 4), s(S_T3), m))

    A('s_mov_b32 %s, 0' % s(S_STEP))
    l0 = A.label('i3')
    A('s_cmp_lg_u32 %s, 3' % s(S_WV))
    A('s_cbranch_scc1 %s' % l0)
    if kv_wait:
        kv_wait(A, S_STEP)
    kv_dma('K', S_STEP, S_STEP)
    kv_dma('V', S_STEP, S_STEP)
    A('s_mov_b32 %s, 1' % s(S_T2))
    kv_dma('K', S_T2, S_T2)
    kv_dma('V', S_T2, S_T2)
    A('s_waitcnt vmcnt(0)')
    A.put(l0)
    A('s_barrier')

    loop = A.label('hstep')
    A.put(loop)
    stamp('top')
    A('s_and_b32 %s, %s, 1' % (s(S_TAG), s(S_STEP)))
    A('s_lshl_b32 %s, %s, 13' % (s(S_T0), s(S_TAG)))
    A('v_add_u32 %s, %s, %s' % (v(vT), s(S_T0), v(vKx)))
    for j in range(4):
        A('v_xor_b32 %s, %d, %s' % (v(vT + 1 + (j & 1)), j << 6, v(vT)))
        A('ds_read_b128 %s, %s' % (v(KXF + 4 * j, 4), v(vT + 1 + (j & 1))))
        A('ds_read_b128 %s, %s offset:4096' % (v(KXF + 16 + 4 * j, 4), v(vT + 1 + (j & 1))))
    for i in range(16):
        A('v_mov_b32 %s, 0' % v(ACCK + i))
    stamp('pre')
    m_poll_and_share(A, R_MA, vL16, MR, vT, abort)
    A('s_waitcnt lgkmcnt(0)')
    stamp('mgot')
    A('s_barrier')
    stamp('B1')
    for i in range(6):
        A('ds_read_b128 %s, %s offset:%d' % (v(MR + 4 * i, 4), v(vL16), 1024 * i))

    def smq(i):
        m = v(MR + 4 * (i % 6), 4)
        return ['v_smfmac_f32_16x16x64_bf16 %s, %s, %s, %s' % (v(ACCQ, 4), m, wq_reg(0, i), v(vIdx)),
                'v_smfmac_f32_16x16x64_bf16 %s, %s, %s, %s' % (v(ACCQ + 4, 4), m, wq_reg(1, i), v(vIdx))]

    def smk(i):
        m = v(MR + 4 * (i % 6), 4)
        return ['v_smfmac_f32_16x16x64_bf16 %s, %s, %s, %s' % (v(ACCK, 4), m, wk_reg(0, i), v(vIdx)),
                'v_smfmac_f32_16x16x64_bf16 %s, %s, %s, %s' % (v(ACCK + 4, 4), m, wk_reg(1, i), v(vIdx))]

    def post(base, off):
        L = []
        for r in range(4):
            L.append('v_permlane32_swap_b32 %s, %s' % (v(base + r), v(base + 4 + r)))
        for r in range(4):
            L.append('v_add_f32 %s, %s, %s' % (v(base + r), v(base + r), v(base + 4 + r)))
        L.append('v_cvt_pk_bf16_f32 %s, %s, %s' % (v(base), v(base), v(base + 1)))
        L.append('v_cvt_pk_bf16_f32 %s, %s, %s' % (v(base + 1), v(base + 2), v(base + 3)))
        L.append('ds_write_b64 %s, %s offset:%d' % (v(vQKw), v(base, 2), off))
        return L

    NSPLIT = 5
    for i in range(10):
        A('s_waitcnt lgkmcnt(%d)' % min(5, 9 - i))
        for x in smq(i):
            A(x)
        if i < NSPLIT:
            for x in smk(i):
                A(x)
        if i + 6 < 10:
            A('ds_read_b128 %s, %s offset:%d' % (v(MR + 4 * (i % 6), 4), v(vL16), 1024 * (i + 6)))
    stamp('q')
    km = []
    for i in range(NSPLIT, 10):
        km += smk(i)
    weave(A, km, post(ACCQ, 0), per=2, start=3)
    A('s_waitcnt lgkmcnt(0)')
    stamp('preB2q')
    A('s_barrier')
    stamp('B2q')
    for j in range(4):
        A('ds_read_b64_tr_b16 %s, %s offset:%d' % (v(QF + 4 * j, 2), v(vQKr), j * 512))
        A('ds_read_b64_tr_b16 %s, %s offset:%d' % (v(QF + 4 * j + 2, 2), v(vQKr), j * 512 + 64))
    for x in post(ACCK, 2048):
        A(x)
    A('s_and_b32 %s, %s, 3' % (s(S_T2), s(S_STEP)))
    A('s_lshl_b32 %s, %s, 5' % (s(S_T2), s(S_T2)))
    A('s_add_u32 %s, %s, %s' % (s(S_T2), s(S_T2), s(S_H)))
    A('s_lshl_b32 %s, %s, 11' % (s(S_T2), s(S_T2)))
    A('s_add_u32 %s, %s, 0x%x' % (s(S_T2), s(S_T2), R_VR))
    A('s_waitcnt lgkmcnt(0)')
    A('s_barrier')
    stamp('B2k')
    for j in range(4):
        A('ds_read_b64_tr_b16 %s, %s offset:%d' % (v(kf(j), 2), v(vQKr), 2048 + j * 512))
        A('ds_read_b64_tr_b16 %s, %s offset:%d' % (v(kf(j) + 2, 2), v(vQKr), 2048 + j * 512 + 64))
    for j in range(4):
        A('v_mfma_f32_16x16x32_bf16 %s, %s, %s, %s' % (v(SCX, 4), v(KXF + 4 * j, 4), v(QF + 4 * j, 4), '0' if j == 0 else v(SCX, 4)))
        A('v_mfma_f32_16x16x32_bf16 %s, %s, %s, %s' % (v(SCX + 4, 4), v(KXF + 16 + 4 * j, 4), v(QF + 4 * j, 4), '0' if j == 0 else v(SCX + 4, 4)))
    A('s_lshl_b32 %s, %s, 13' % (s(S_T0), s(S_TAG)))
    A('v_add_u32 %s, %s, %s' % (v(vT), s(S_T0), v(vVx)))
    A('s_waitcnt lgkmcnt(0)')
    vxr = []
    for t in range(8):
        vxr.append('v_xor_b32 %s, %d, %s' % (v(vT + 1 + (t & 1)), t << 5, v(vT)))
        vxr.append('ds_read_b64_tr_b16 %s, %s' % (v(KXF + 4 * t, 2), v(vT + 1 + (t & 1))))
        vxr.append('ds_read_b64_tr_b16 %s, %s offset:4096' % (v(KXF + 4 * t + 2, 2), v(vT + 1 + (t & 1))))
    sm = ['v_mfma_f32_16x16x32_bf16 %s, %s, %s, %s' % (v(SCM, 4), v(kf(j), 4), v(QF + 4 * j, 4), '0' if j == 0 else v(SCM, 4)) for j in range(4)]
    weave(A, sm, vxr, per=3)
    lk = A.label('ks')
    A('s_cmp_lg_u32 %s, 1' % s(S_WV))
    A('s_cbranch_scc1 %s' % lk)
    A('s_lshl_b32 %s, %s, 16' % (s(S_T0), s(S_STEP)))
    A('s_mov_b64 exec, %s' % s(S_C8, 2))
    for j in range(4):
        A('buffer_store_dwordx4 %s, %s, %s, %s offen offset:%d%s' % (v(kf(j), 4), v(vKst), s(S_WS, 4), s(S_T0), 64 * j, ' sc1' if kv_sc1 else ''))
    A('s_mov_b64 exec, -1')
    A.put(lk)
    A('s_cmp_eq_u32 %s, 63' % s(S_STEP))
    A('s_cbranch_scc1 %s' % done)

    def vloads():
        for p in range(4):
            A('buffer_load_dwordx2 %s, %s, %s, %s offen offset:%d sc1' % (v(VMF + 2 * p, 2), v(vVp), s(S_WS, 4), s(S_T2), 512 * p))
    vloads()
    stamp('S')
    mx, t1, t2 = vT, vT + 1, vT + 2
    A('v_max3_f32 %s, %s, %s, %s' % (v(mx), v(SCX), v(SCX + 1), v(SCX + 2)))
    A('v_max3_f32 %s, %s, %s, %s' % (v(t1), v(SCX + 3), v(SCX + 4), v(SCX + 5)))
    A('v_max3_f32 %s, %s, %s, %s' % (v(mx), v(mx), v(SCX + 6), v(SCX + 7)))
    A('v_max3_f32 %s, %s, %s, %s' % (v(t1), v(t1), v(SCM), v(SCM + 1)))
    A('v_max3_f32 %s, %s, %s, %s' % (v(mx), v(mx), v(SCM + 2), v(SCM + 3)))
    A('v_max_f32 %s, %s, %s' % (v(mx), v(mx), v(t1)))
    A('v_mov_b32 %s, %s' % (v(t1), v(mx)))
    A('v_permlane32_swap_b32 %s, %s' % (v(mx), v(t1)))
    A('v_max_f32 %s, %s, %s' % (v(mx), v(mx), v(t1)))
    A('v_mov_b32 %s, %s' % (v(t1), v(mx)))
    A('v_permlane16_swap_b32 %s, %s' % (v(mx), v(t1)))
    A('s_mov_b32 %s, %s' % (s(S_T0), f32(C1)))
    A('v_max_f32 %s, %s, %s' % (v(mx), v(mx), v(t1)))
    A('v_mul_f32 %s, %s, %s' % (v(mx), s(S_T0), v(mx)))
    sc = [SCX + i for i in range(8)] + [SCM + i for i in range(4)]
    for r in sc[:8]:
        A('v_fma_f32 %s, %s, %s, -%s' % (v(r), v(r), s(S_T0), v(mx)))
    for r in sc[:8]:
        A('v_exp_f32 %s, %s' % (v(r), v(r)))
    for i in range(4):
        A('v_cvt_pk_bf16_f32 %s, %s, %s' % (v(PX + i), v(SCX + 2 * i), v(SCX + 2 * i + 1)))
    rest = []
    for r in sc[8:]:
        rest.append('v_fma_f32 %s, %s, %s, -%s' % (v(r), v(r), s(S_T0), v(mx)))
    for r in sc[8:]:
        rest.append('v_exp_f32 %s, %s' % (v(r), v(r)))
    rest += ['v_cvt_pk_bf16_f32 %s, %s, %s' % (v(t1), v(SCM), v(SCM + 1)),
             'v_cvt_pk_bf16_f32 %s, %s, %s' % (v(t2), v(SCM + 2), v(SCM + 3)),
             'v_cndmask_b32 %s, 0, %s, %s' % (v(PML), v(t1), s(S_GLO, 2)),
             'v_cndmask_b32 %s, 0, %s, %s' % (v(PML + 1), v(t2), s(S_GLO, 2)),
             'v_cndmask_b32 %s, %s, 0, %s' % (v(PMH), v(t1), s(S_GLO, 2)),
             'v_cndmask_b32 %s, %s, 0, %s' % (v(PMH + 1), v(t2), s(S_GLO, 2)),
             'v_add_f32 %s, %s, %s' % (v(t1), v(SCM), v(SCM + 1)),
             'v_add_f32 %s, %s, %s' % (v(t2), v(SCM + 2), v(SCM + 3)),
             'v_add_f32 %s, %s, %s' % (v(t1), v(t1), v(t2)),
             'v_cndmask_b32 %s, 0, %s, %s' % (v(t1), v(t1), s(S_GLO, 2))]
    stamp('sm')
    A('s_waitcnt lgkmcnt(0)')
    ox = ['v_mfma_f32_16x16x32_bf16 %s, %s, %s, 0' % (v(OA + 4 * t, 4), v(KXF + 4 * t, 4), v(PX, 4)) for t in range(8)]
    weave(A, ox[:6], rest, per=3)
    rest2 = []
    for i in range(0, 8, 2):
        rest2.append('v_add_f32 %s, %s, %s' % (v(t2), v(SCX + i), v(SCX + i + 1)))
        rest2.append('v_add_f32 %s, %s, %s' % (v(t1), v(t1), v(t2)))
    weave(A, ox[6:], rest2, per=4)
    A('v_mov_b32 %s, %s' % (v(t2), v(t1)))
    A('v_permlane32_swap_b32 %s, %s' % (v(t1), v(t2)))
    A('v_add_f32 %s, %s, %s' % (v(t1), v(t1), v(t2)))
    A('v_mov_b32 %s, %s' % (v(t2), v(t1)))
    A('v_permlane16_swap_b32 %s, %s' % (v(t1), v(t2)))
    A('v_add_f32 %s, %s, %s' % (v(t1), v(t1), v(t2)))
    A('v_rcp_f32 %s, %s' % (v(vRinv), v(t1)))
    for i in range(32):
        A('v_mov_b32 %s, 0' % v(WA + i))
    stamp('ox')
    A('s_mov_b32 %s, 0' % s(S_SPIN))
    lv, lv2 = A.label('vp'), A.label('vq')
    A('s_branch %s' % lv2)
    A.put(lv)
    vloads()
    A.put(lv2)
    A('s_waitcnt vmcnt(0)')
    A('v_max3_u32 %s, %s, %s, %s' % (v(t1), v(VMF), v(VMF + 1), v(VMF + 2)))
    A('v_max3_u32 %s, %s, %s, %s' % (v(t2), v(VMF + 3), v(VMF + 4), v(VMF + 5)))
    A('v_max3_u32 %s, %s, %s, %s' % (v(t1), v(t1), v(VMF + 6), v(VMF + 7)))
    A('v_max_u32 %s, %s, %s' % (v(t1), v(t1), v(t2)))
    A('v_cmp_eq_u32 vcc, -1, %s' % v(t1))
    okv = A.label('okv')
    A('s_cbranch_vccz %s' % okv)
    spin_retry(A, lv, abort)
    A.put(okv)
    if stamps:
        A('s_add_u32 %s, %s, %s' % (s(S_ST + 6), s(S_ST + 6), s(S_SPIN)))
    order = [0, 2, 1, 3, 4, 6, 5, 7]
    for t in order:
        A('v_mfma_f32_16x16x16_bf16 %s, %s, %s, %s' % (v(OA + 4 * t, 4), v(VMF + 2 * (t >> 1), 2), v(PMH if t & 1 else PML, 2), v(OA + 4 * t, 4)))
    stamp('om')
    for i in range(32, 40):
        A('v_mov_b32 %s, 0' % v(WA + i))
    A('v_mov_b32 %s, %s' % (v(t1), s(S_TAG)))

    def pack(kk):
        L = []
        for j in range(8):
            lo = OA + 4 * (4 * kk + (j >> 2)) + (j & 3)
            L.append('v_cndmask_b32 %s, %s, %s, %s' % (v(lo), v(lo), v(lo + 8), s(S_HALF, 2)))
        for j in range(8):
            lo = OA + 4 * (4 * kk + (j >> 2)) + (j & 3)
            L.append('v_mul_f32 %s, %s, %s' % (v(lo), v(lo), v(vRinv)))
        for j in range(4):
            lo = OA + 4 * (4 * kk + (j >> 1)) + 2 * (j & 1)
            L.append('v_cvt_pk_bf16_f32 %s, %s, %s' % (v(OF + 4 * kk + j), v(lo), v(lo + 1)))
        return L
    for x in pack(0):
        A(x)
    stamp('pack0')
    def smw(t, kk, breg):
        return 'v_smfmac_f32_16x16x64_bf16 %s, %s, %s, %s' % (v(WA + 4 * t, 4), v(OF + 4 * kk, 4), breg, v(vIdx))
    weave(A, [smw(t, 0, v(WOR + (t * 2) * 8, 8)) for t in range(4)], pack(1), per=5)

    def wol(n):
        return WL + 8 * (n % 4)

    def rd(n):
        return ['ds_read_b128 %s, %s offset:%d' % (v(wol(n), 4), v(vWoL), n * 2048),
                'ds_read_b128 %s, %s offset:%d' % (v(wol(n) + 4, 4), v(vWoL), n * 2048 + 1024)]

    def wpost(i):
        b = WA + 8 * i
        L = []
        for r in range(4):
            L.append('v_permlane32_swap_b32 %s, %s' % (v(b + r), v(b + 4 + r)))
        for r in range(4):
            L.append('v_add_f32 %s, %s, %s' % (v(b + r), v(b + r), v(b + 4 + r)))
        L.append('v_cvt_pk_bf16_f32 %s, %s, %s' % (v(b), v(b), v(b + 1)))
        L.append('v_cvt_pk_bf16_f32 %s, %s, %s' % (v(b + 1), v(b + 2), v(b + 3)))
        L.append('v_bfi_b32 %s, 1, %s, %s' % (v(b), v(t1), v(b)))
        L.append('v_bfi_b32 %s, 1, %s, %s' % (v(b + 1), v(t1), v(b + 1)))
        return L

    def wstore(i):
        st2(A, ['buffer_store_dwordx2 %s, %s, %s, 0 offen' % (v(WA + 8 * i, 2), v(vPst + i), s(S_WS, 4))])
    rds = []
    for n in range(4):
        rds += rd(n)
    weave(A, [smw(t, 1, v(WOR + (t * 2 + 1) * 8, 8)) for t in range(4)], rds, per=2)
    stamp('wreg')
    for p in range(2, 5):
        fill = wpost(p - 2)
        for q in range(4):
            n = 4 * (p - 2) + q
            rem = min(4, 12 - n) - 1
            A('s_waitcnt lgkmcnt(%d)' % (2 * rem))
            A(smw(4 + n // 2, n & 1, v(wol(n), 8)))
            if n + 4 < 12:
                for x in rd(n + 4):
                    A(x)
            for _ in range(3):
                A(fill.pop(0))
        wstore(p - 2)
    stamp('wlds')
    for x in wpost(3):
        A(x)
    wstore(3)
    for x in wpost(4):
        A(x)
    wstore(4)
    stamp('W')
    lw3, lb3 = A.label('gw3'), A.label('gb3')
    A('s_cmp_eq_u32 %s, 3' % s(S_WV))
    A('s_cbranch_scc1 %s' % lw3)
    A('s_mov_b32 %s, 0' % s(S_SPIN))

    def gload(i):
        st, sl = i >> 1, i & 1
        base = vGat if st < 2 else vGat2
        return 'buffer_load_dwordx2 %s, %s, %s, 0 offen offset:%d sc1' % (v(G + 2 * i, 2), v(base), s(S_WS, 4), (st & 1) * 2560 + sl * 320)
    for i in range(8):
        A(gload(i))
    A('s_add_u32 %s, %s, 1' % (s(S_T0), s(S_STEP)))
    A('s_and_b32 %s, %s, 3' % (s(S_T0), s(S_T0)))
    A('s_mul_i32 %s, %s, 10240' % (s(S_T0), s(S_T0)))
    A('s_add_u32 %s, %s, 0x%x' % (s(S_T0), s(S_T0), R_MA))
    lchk, lodd, ljoin, okg = A.label('gc'), A.label('go'), A.label('gj'), A.label('okg')
    A.put(lchk)
    A('s_waitcnt vmcnt(0)')
    stamp('g1')
    A('s_cmp_eq_u32 %s, 1' % s(S_TAG))
    A('s_cbranch_scc1 %s' % lodd)
    A('v_or3_b32 %s, %s, %s, %s' % (v(t2), v(G), v(G + 1), v(G + 2)))
    A('v_or3_b32 %s, %s, %s, %s' % (v(mx), v(G + 3), v(G + 4), v(G + 5)))
    for i in range(6, 14, 4):
        A('v_or3_b32 %s, %s, %s, %s' % (v(t2), v(t2), v(G + i), v(G + i + 1)))
        A('v_or3_b32 %s, %s, %s, %s' % (v(mx), v(mx), v(G + i + 2), v(G + i + 3)))
    A('v_or3_b32 %s, %s, %s, %s' % (v(t2), v(t2), v(G + 14), v(G + 15)))
    A('s_branch %s' % ljoin)
    A.put(lodd)
    A('v_bitop3_b32 %s, 0, %s, %s bitop3:0xf7' % (v(t2), v(G), v(G + 1)))
    A('v_bitop3_b32 %s, 0, %s, %s bitop3:0xf7' % (v(mx), v(G + 2), v(G + 3)))
    for i in range(4, 16, 4):
        A('v_bitop3_b32 %s, %s, %s, %s bitop3:0xf7' % (v(t2), v(t2), v(G + i), v(G + i + 1)))
        A('v_bitop3_b32 %s, %s, %s, %s bitop3:0xf7' % (v(mx), v(mx), v(G + i + 2), v(G + i + 3)))
    A.put(ljoin)
    A('v_or_b32 %s, %s, %s' % (v(t2), v(t2), v(mx)))
    A('v_and_b32 %s, 1, %s' % (v(t2), v(t2)))
    A('v_cmp_ne_u32 vcc, 0, %s' % v(t2))
    A('s_cbranch_vccz %s' % okg)
    for i in range(8):
        A('v_xor_b32 %s, %s, %s' % (v(t2), v(G + 2 * i), v(t1)))
        A('v_xor_b32 %s, %s, %s' % (v(mx), v(G + 2 * i + 1), v(t1)))
        A('v_or_b32 %s, %s, %s' % (v(t2), v(t2), v(mx)))
        A('v_and_b32 %s, 1, %s' % (v(t2), v(t2)))
        A('v_cmp_ne_u32 vcc, 0, %s' % v(t2))
        sk = A.label('gs')
        A('s_cbranch_vccz %s' % sk)
        A('s_mov_b64 exec, vcc')
        A(gload(i))
        A('s_mov_b64 exec, -1')
        A.put(sk)
    spin_retry(A, lchk, abort)
    A.put(okg)
    stamp('gok')
    if stamps:
        A('s_add_u32 %s, %s, %s' % (s(S_ST + 7), s(S_ST + 7), s(S_SPIN)))
    for st in range(4):
        A('v_mfma_f32_16x16x32_bf16 %s, %s, %s, %s' % (v(GD, 4), v(G + 4 * st, 4), v(SEL, 4), '0' if st == 0 else v(GD, 4)))
    A('s_mov_b64 exec, %s' % s(S_PUB, 2))
    A('v_cvt_pk_bf16_f32 %s, %s, %s' % (v(GD), v(GD), v(GD + 1)))
    A('v_cvt_pk_bf16_f32 %s, %s, %s' % (v(GD + 1), v(GD + 2), v(GD + 3)))
    A('v_min_u32 %s, 0xfffffffe, %s' % (v(GD), v(GD)))
    A('v_min_u32 %s, 0xfffffffe, %s' % (v(GD + 1), v(GD + 1)))
    st2(A, ['buffer_store_dwordx2 %s, %s, %s, %s offen' % (v(GD, 2), v(vMst), s(S_WS, 4), s(S_T0))])
    A('ds_write_b64 %s, %s' % (v(vRw), v(GD, 2)))
    A('s_mov_b64 exec, -1')
    A('s_waitcnt lgkmcnt(0)')
    A('s_barrier')
    lend = A.label('send')
    A('s_branch %s' % lend)
    A.put(lw3)
    lnk = A.label('nok')
    A('s_add_u32 %s, %s, 2' % (s(S_T2), s(S_STEP)))
    A('s_cmp_ge_u32 %s, 63' % s(S_T2))
    A('s_cbranch_scc1 %s' % lnk)
    if kv_wait:
        kv_wait(A, S_T2)
    kv_dma('K', S_T2, S_TAG)
    A.put(lnk)
    A('s_add_u32 %s, %s, 1' % (s(S_T0), s(S_STEP)))
    A('s_and_b32 %s, %s, 3' % (s(S_T0), s(S_T0)))
    A('s_mul_i32 %s, %s, 10240' % (s(S_T0), s(S_T0)))
    A('s_add_u32 %s, %s, 0x%x' % (s(S_T0), s(S_T0), R_MB))
    A('s_add_u32 %s, %s, 3' % (s(S_T1), s(S_STEP)))
    A('s_and_b32 %s, %s, 3' % (s(S_T1), s(S_T1)))
    A('s_mul_i32 %s, %s, 10240' % (s(S_T1), s(S_T1)))
    A('v_mov_b32 %s, -1' % v(G + 2))
    A('v_mov_b32 %s, -1' % v(G + 3))
    A('s_barrier')
    A('s_mov_b64 exec, %s' % s(S_PUB, 2))
    A('ds_read_b64 %s, %s' % (v(G, 2), v(vRw)))
    A('s_waitcnt lgkmcnt(0)')
    A('buffer_store_dwordx2 %s, %s, %s, %s offen sc1' % (v(G, 2), v(vMst), s(S_WS, 4), s(S_T0)))
    A('s_add_u32 %s, %s, 0x%x' % (s(S_T0), s(S_T1), R_MB))
    A('buffer_store_dwordx2 %s, %s, %s, %s offen sc1' % (v(G + 2, 2), v(vMst), s(S_WS, 4), s(S_T0)))
    A('s_add_u32 %s, %s, 0x%x' % (s(S_T0), s(S_T1), R_MA))
    st2(A, ['buffer_store_dwordx2 %s, %s, %s, %s offen' % (v(G + 2, 2), v(vMst), s(S_WS, 4), s(S_T0))])
    A('s_mov_b64 exec, -1')
    A('s_cmp_ge_u32 %s, 63' % s(S_T2))
    A('s_cbranch_scc1 %s' % lend)
    kv_dma('V', S_T2, S_TAG)
    A.put(lend)
    if stamps:
        stamp('end')
        A('s_waitcnt lgkmcnt(0)')
        for i in range(5):
            A('s_sub_u32 %s, %s, %s' % (s(S_T0), s(6 + 2 * i), s(4 + 2 * i)))
            A('s_add_u32 %s, %s, %s' % (s(S_ST + i), s(S_ST + i), s(S_T0)))
    A('s_add_u32 %s, %s, 1' % (s(S_STEP), s(S_STEP)))
    A('s_branch %s' % loop)


def v_cu(A, abort, done):
    vlane = 1
    vIdx, vL16, vVs = 3, 4, 6
    vT = 24
    A('v_and_b32 %s, 63, v0' % v(vlane))
    A('v_lshrrev_b32 v2, 6, v0')
    A('v_readfirstlane_b32 %s, v2' % s(S_WV))
    lane_consts(A, vlane)
    make_srd(A, S_WS, P_WS, WS_SIZE)
    A('s_lshl_b32 %s, %s, 8' % (s(S_T2), s(S_H)))
    make_srd(A, S_W, P_WV, 640 * 8192)
    load_w_frags(A, 8192, S_T2, wq_reg, 2, vlane, vT, 64)
    A('v_mov_b32 %s, 0x4444' % v(vIdx))
    A('v_mov_b32 v2, 0xeeee')
    A('v_cndmask_b32 %s, %s, v2, %s' % (v(vIdx), v(vIdx), s(S_HALF, 2)))
    A('v_lshlrev_b32 %s, 4, %s' % (v(vL16), v(vlane)))
    A('s_lshl_b32 %s, %s, 11' % (s(S_T0), s(S_H)))
    A('s_lshl_b32 %s, %s, 9' % (s(S_T1), s(S_WV)))
    A('s_add_u32 %s, %s, %s' % (s(S_T0), s(S_T0), s(S_T1)))
    A('v_lshlrev_b32 v2, 3, %s' % v(vlane))
    A('v_add_u32 %s, %s, v2' % (v(vVs), s(S_T0)))
    A('v_mov_b32 v20, -1')
    A('v_mov_b32 v21, -1')
    A('s_mov_b32 %s, 0' % s(S_STEP))
    A('s_barrier')
    loop = A.label('vstep')
    A.put(loop)
    MR, ACC = 32, 72
    for i in range(8):
        A('v_mov_b32 %s, 0' % v(ACC + i))
    m_poll_and_share(A, R_MB, vL16, MR, vT, abort)
    A('s_barrier')
    for i in range(10):
        A('ds_read_b128 %s, %s offset:%d' % (v(MR + 4 * i, 4), v(vL16), 1024 * i))
    A('s_and_b32 %s, %s, 3' % (s(S_T0), s(S_STEP)))
    A('s_lshl_b32 %s, %s, 16' % (s(S_T0), s(S_T0)))
    A('s_add_u32 %s, %s, 0x%x' % (s(S_T0), s(S_T0), R_VR))
    for i in range(10):
        A('s_waitcnt lgkmcnt(%d)' % (9 - i))
        A('v_smfmac_f32_16x16x64_bf16 %s, %s, %s, %s' % (v(ACC, 4), v(MR + 4 * i, 4), wq_reg(0, i), v(vIdx)))
        A('v_smfmac_f32_16x16x64_bf16 %s, %s, %s, %s' % (v(ACC + 4, 4), v(MR + 4 * i, 4), wq_reg(1, i), v(vIdx)))
    for r in range(4):
        A('v_permlane32_swap_b32 %s, %s' % (v(ACC + r), v(ACC + 4 + r)))
    for r in range(4):
        A('v_add_f32 %s, %s, %s' % (v(ACC + r), v(ACC + r), v(ACC + 4 + r)))
    A('v_cvt_pk_bf16_f32 %s, %s, %s' % (v(ACC), v(ACC), v(ACC + 1)))
    A('v_cvt_pk_bf16_f32 %s, %s, %s' % (v(ACC + 1), v(ACC + 2), v(ACC + 3)))
    A('v_min_u32 %s, 0xfffffffe, %s' % (v(ACC), v(ACC)))
    A('v_min_u32 %s, 0xfffffffe, %s' % (v(ACC + 1), v(ACC + 1)))
    A('buffer_store_dwordx2 %s, %s, %s, %s offen sc1' % (v(ACC, 2), v(vVs), s(S_WS, 4), s(S_T0)))
    A('s_lshl_b32 %s, %s, 16' % (s(S_T0), s(S_STEP)))
    A('s_add_u32 %s, %s, 0x%x' % (s(S_T0), s(S_T0), WS_VM))
    A('buffer_store_dwordx2 %s, %s, %s, %s offen sc1' % (v(ACC, 2), v(vVs), s(S_WS, 4), s(S_T0)))
    A('s_add_u32 %s, %s, 2' % (s(S_T0), s(S_STEP)))
    A('s_and_b32 %s, %s, 3' % (s(S_T0), s(S_T0)))
    A('s_lshl_b32 %s, %s, 16' % (s(S_T0), s(S_T0)))
    A('s_add_u32 %s, %s, 0x%x' % (s(S_T0), s(S_T0), R_VR))
    A('buffer_store_dwordx2 v[20:21], %s, %s, %s offen sc1' % (v(vVs), s(S_WS, 4), s(S_T0)))
    A('s_waitcnt vmcnt(0)')
    A('s_barrier')
    A('s_add_u32 %s, %s, 1' % (s(S_STEP), s(S_STEP)))
    A('s_cmp_lt_u32 %s, 64' % s(S_STEP))
    A('s_cbranch_scc1 %s' % loop)
    A('s_branch %s' % done)


def ring_init(A):
    end = A.label('rie')
    A('s_cmp_ge_u32 s2, %d' % (RING_BYTES // 4096))
    A('s_cbranch_scc1 %s' % end)
    load_ptrs(A)
    make_srd(A, 44, P_WS, WS_SIZE)
    make_srd(A, 48, P_MEM0, 10240)
    A('s_lshl_b32 s3, s2, 12')
    A('v_lshlrev_b32 v1, 4, v0')
    A('v_add_u32 v1, s3, v1')
    A('v_and_b32 v2, 0xffff, v1')
    A('v_bfe_u32 v3, v2, 4, 3')
    A('v_mul_u32_u24 v3, 1280, v3')
    A('v_lshrrev_b32 v8, 10, v2')
    A('v_lshl_add_u32 v3, v8, 7, v3')
    A('v_bfe_u32 v8, v2, 7, 3')
    A('v_lshl_add_u32 v3, v8, 4, v3')
    A('buffer_load_dwordx4 v[4:7], v3, s[48:51], 0 offen')
    A('s_movk_i32 s54, 10240')
    A('v_cmp_gt_u32 s[52:53], s54, v2')
    A('s_mov_b32 s54, 131072')
    A('v_cmp_gt_u32 vcc, s54, v1')
    A('s_and_b64 vcc, vcc, s[52:53]')
    A('s_waitcnt vmcnt(0)')
    for i in range(4):
        A('v_min_u32 %s, 0xfffffffe, %s' % (v(4 + i), v(4 + i)))
        A('v_cndmask_b32 %s, -1, %s, vcc' % (v(4 + i), v(4 + i)))
    A('s_mov_b32 s54, 0x%x' % WS_RING)
    A('buffer_store_dwordx4 v[4:7], v1, s[44:47], s54 offen')
    A.put(end)
    A('s_endpgm')


def bcast_atomic(A, dbg_off, add, sdst):
    A('v_mov_b32 v1, %d' % dbg_off)
    A('v_mov_b32 v2, %d' % add)
    A('v_cmp_eq_u32 vcc, 0, v0')
    A('s_and_saveexec_b64 s[6:7], vcc')
    lt = A.label('tk')
    A('s_cbranch_execz %s' % lt)
    A('global_atomic_add v3, v1, v2, %s sc0' % s(P_DBG, 2))
    A('s_waitcnt vmcnt(0)')
    A('v_mov_b32 v4, 0')
    A('ds_write_b32 v4, v3')
    A('s_waitcnt lgkmcnt(0)')
    A.put(lt)
    A('s_mov_b64 exec, s[6:7]')
    A('s_barrier')
    A('v_mov_b32 v4, 0')
    A('ds_read_b32 v3, v4')
    A('s_waitcnt lgkmcnt(0)')
    A('v_readfirstlane_b32 %s, v3' % s(sdst))
    A('s_barrier')


def h_mode_wait(A, abort):
    lp = A.label('hm')
    A('s_mov_b32 %s, 0' % s(S_SPIN))
    A.put(lp)
    bcast_atomic(A, 0, 0, S_T0)
    ok = A.label('hmo')
    A('s_cmp_ge_u32 %s, 32' % s(S_T0))
    A('s_cbranch_scc1 %s' % ok)
    A('s_sleep 8')
    spin_retry(A, lp, abort)
    A.put(ok)
    bcast_atomic(A, 8, 0, S_T0)
    A('s_cmp_eq_u32 %s, 0' % s(S_T0))
    A('s_cselect_b32 %s, %d, 0' % (s(S_FAST), int(os.environ.get('FAST', 1))))


def chain_kernel(A, stamps=False):
    abort, done = A.label('abort'), A.label('done')
    lh, lv, lo = A.label('hrole'), A.label('vrole'), A.label('other')
    A('s_cmp_ge_u32 s2, 256')
    A('s_cbranch_scc1 %s' % done)
    load_ptrs(A)
    A('s_getreg_b32 s3, hwreg(HW_REG_XCC_ID)')
    A('s_and_b32 s3, s3, 7')
    A('s_cmp_lg_u32 s3, %d' % int(os.environ.get('HXCD', 0)))
    A('s_cbranch_scc1 %s' % lo)
    bcast_atomic(A, 0, 1, S_H)
    A('s_cmp_lt_u32 %s, 32' % s(S_H))
    A('s_cbranch_scc1 %s' % lh)
    A.put(lo)
    bcast_atomic(A, 4, 1, S_H)
    A('s_cmp_lt_u32 %s, 32' % s(S_H))
    A('s_cbranch_scc1 %s' % lv)
    A('s_mov_b32 %s, 0' % s(S_SPIN))
    lw = A.label('sw')
    A.put(lw)
    bcast_atomic(A, 0, 0, S_T0)
    A('s_cmp_ge_u32 %s, 32' % s(S_T0))
    A('s_cbranch_scc1 %s' % done)
    A('s_sleep 32')
    A('s_add_u32 %s, %s, 1' % (s(S_SPIN), s(S_SPIN)))
    A('s_cmp_lt_u32 %s, 16' % s(S_SPIN))
    A('s_cbranch_scc1 %s' % lw)
    bcast_atomic(A, 8, 1, S_T0)
    bcast_atomic(A, 0, 1, S_H)
    A('s_cmp_ge_u32 %s, 32' % s(S_H))
    A('s_cbranch_scc1 %s' % done)
    A.put(lh)
    h_mode_wait(A, abort)
    for i in range(8):
        A('s_mov_b32 %s, 0' % s(S_ST + i))
    hdone = A.label('hdone')
    h_cu(A, abort, hdone, stamps=stamps)
    A.put(hdone)
    if stamps:
        A('s_lshl_b32 %s, %s, 2' % (s(S_T0), s(S_H)))
        A('s_add_u32 %s, %s, %s' % (s(S_T0), s(S_T0), s(S_WV)))
        A('s_lshl_b32 %s, %s, 5' % (s(S_T0), s(S_T0)))
        A('s_add_u32 %s, %s, 0x%x' % (s(S_T0), s(S_T0), 200 * MB))
        for i in range(8):
            A('v_mov_b32 %s, %s' % (v(40 + i), s(S_ST + i)))
        A('v_mov_b32 v2, 0')
        A('buffer_store_dwordx4 v[40:43], v2, %s, %s offen' % (s(S_WS, 4), s(S_T0)))
        A('buffer_store_dwordx4 v[44:47], v2, %s, %s offen offset:16' % (s(S_WS, 4), s(S_T0)))
    A('s_branch %s' % done)
    A.put(lv)
    v_cu(A, abort, done)
    A.put(abort)
    A('s_mov_b64 exec, -1')
    A('v_mov_b32 v1, 64')
    A('v_mov_b32 v2, 1')
    A('global_atomic_add v1, v2, %s' % s(P_DBG, 2))
    A.put(done)
    A('s_endpgm')
```

```python
import struct
from asmlib import Asm, v, a, s
from common import *
from gemm import Operand, gemm_tile, store_epilogue_bf16

def f32(x):
    return '0x%08x' % struct.unpack('<I', struct.pack('<f', x))[0]

C2_ROWS = 62
N_F2G2 = 2 * 640 * 640 // 8
N_WT = 321 * 512
PREP_WG_F = 400
PREP_WG_W = 642
PREP_WG_C = 16


def prep_f2g2(A, s_wg):
    A('s_lshl_b32 s3, %s, 8' % s(s_wg))
    A('v_add_u32 v1, s3, v0')
    A('s_mov_b32 s4, 51200')
    A('v_cmp_le_u32 s[6:7], s4, v1')
    A('v_subrev_u32 v2, s4, v1')
    A('v_cndmask_b32 v1, v1, v2, s[6:7]')
    A('s_mov_b32 s4, 52429')
    A('v_mul_lo_u32 v2, v1, s4')
    A('v_lshrrev_b32 v2, 22, v2')
    A('v_mul_u32_u24 v3, 80, v2')
    A('v_sub_u32 v3, v1, v3')
    A('v_lshlrev_b32 v3, 3, v3')
    for e in range(8):
        A('v_add_u32 v4, %d, v3' % e)
        A('v_cndmask_b32 v5, v2, v4, s[6:7]')
        A('v_cndmask_b32 v6, v4, v2, s[6:7]')
        A('s_movk_i32 s4, 320')
        A('v_cmp_lt_u32 vcc, s4, v5')
        A('v_subrev_u32 v7, s4, v5')
        A('v_cndmask_b32 v7, v5, v7, vcc')
        A('v_mul_u32_u24 v8, v7, v6')
        A('s_mov_b32 s4, 0x66667')
        A('v_lshlrev_b32 v9, 4, v8')
        A('v_mul_hi_u32 v9, v9, s4')
        A('v_mul_u32_u24 v9, 640, v9')
        A('v_sub_u32 v8, v8, v9')
        A('v_cvt_f32_u32 v8, v8')
        A('v_mul_f32 v8, %s, v8' % f32(1.0 / 640))
        A('v_cos_f32 v9, v8')
        A('v_sin_f32 v10, v8')
        A('v_sub_f32 v10, 0, v10')
        A('v_cndmask_b32 v9, v9, v10, vcc')
        A('v_cmp_eq_u32 s[8:9], 0, v5')
        A('s_movk_i32 s4, 320')
        A('v_cmp_eq_u32 s[10:11], s4, v5')
        A('s_or_b64 s[8:9], s[8:9], s[10:11]')
        A('v_mov_b32 v10, %s' % f32(2.0 / 640))
        A('v_mov_b32 v11, %s' % f32(1.0 / 640))
        A('v_cndmask_b32 v10, v10, v11, s[8:9]')
        A('v_cndmask_b32 v10, 1.0, v10, s[6:7]')
        A('v_mul_f32 %s, v9, v10' % v(16 + e))
    for i in range(4):
        A('v_cvt_pk_bf16_f32 %s, %s, %s' % (v(24 + i), v(16 + 2 * i), v(17 + 2 * i)))
    A('v_lshlrev_b32 v1, 4, v1')
    A('v_mov_b32 v2, 0x%x' % WS_F2)
    A('v_mov_b32 v3, 0x%x' % WS_G2)
    A('v_cndmask_b32 v2, v2, v3, s[6:7]')
    A('v_add_u32 v1, v1, v2')
    A('buffer_store_dwordx4 v[24:27], v1, s[44:47], 0 offen{SC}')


def prep_wt(A, s_wg):
    A('s_lshl_b32 s3, %s, 8' % s(s_wg))
    A('v_add_u32 v1, s3, v0')
    A('s_mov_b32 s4, 0xcc2a')
    A('s_mov_b32 s4, 13379961')
    A('v_mul_hi_u32 v2, v1, s4')
    A('v_mul_u32_u24 v3, 321, v2')
    A('v_sub_u32 v3, v1, v3')
    A('v_and_b32 v4, 31, v2')
    A('v_bfe_u32 v5, v2, 5, 1')
    A('v_lshrrev_b32 v6, 6, v2')
    A('v_lshlrev_b32 v6, 3, v6')
    A('v_lshl_add_u32 v6, v5, 2, v6')
    A('v_lshl_add_u32 v4, v6, 5, v4')
    A('v_mul_u32_u24 v4, 321, v4')
    A('v_add_u32 v4, v4, v3')
    A('v_lshlrev_b32 v4, 1, v4')
    for i in range(4):
        A('s_mov_b32 s4, %d' % (i * 32 * 642))
        A('buffer_load_ushort %s, v4, s[48:51], s4 offen' % v(8 + i))
        A('buffer_load_ushort %s, v4, s[52:55], s4 offen' % v(12 + i))
    A('s_waitcnt vmcnt(0)')
    for i in range(4):
        A('v_lshl_or_b32 %s, %s, 16, %s' % (v(8 + i), v(12 + i), v(8 + i)))
    A('v_lshlrev_b32 v3, 13, v3')
    A('v_lshl_add_u32 v3, v2, 4, v3')
    A('s_mov_b32 s4, 0x%x' % WS_WT)
    A('buffer_store_dwordx4 v[8:11], v3, s[44:47], s4 offen{SC}')


def prep_c2(A, s_wg):
    A('s_lshl_b32 s3, %s, 8' % s(s_wg))
    A('v_add_u32 v1, s3, v0')
    A('v_lshrrev_b32 v2, 6, v1')
    A('v_readfirstlane_b32 s5, v2')
    A('v_and_b32 v3, 31, v0')
    A('v_bfe_u32 v4, v0, 5, 1')
    end = A.label('c2e')
    lfb, ltw = A.label('c2b'), A.label('c2t')
    A('s_cmp_ge_u32 s5, %d' % C2_ROWS)
    A('s_cbranch_scc1 %s' % end)
    A('s_cmp_ge_u32 s5, 30')
    A('s_cbranch_scc1 %s' % ltw)
    A('s_cmp_ge_u32 s5, 6')
    A('s_cbranch_scc1 %s' % lfb)
    A('s_lshr_b32 s6, s5, 1')
    A('s_and_b32 s7, s5, 1')
    A('s_lshl_b32 s7, s7, 4')
    A('v_lshl_add_u32 v5, v4, 3, s7')
    for j in range(8):
        A('v_add_u32 v6, %d, v5' % j)
        A('v_mul_u32_u24 v6, v6, v3')
        A('v_and_b32 v6, 31, v6')
        A('v_cvt_f32_u32 v6, v6')
        A('v_mul_f32 %s, %s, v6' % (v(16 + j), f32(1.0 / 32)))
    lsel = A.label('c2s')
    A('s_branch %s' % lsel)
    A.put(lfb)
    A('s_sub_u32 s8, s5, 6')
    A('s_lshr_b32 s6, s8, 3')
    A('s_bfe_u32 s7, s8, 0x10002')
    A('s_lshl_b32 s7, s7, 5')
    A('v_add_u32 v3, s7, v3')
    A('s_and_b32 s7, s8, 3')
    A('s_lshl_b32 s7, s7, 4')
    A('v_lshl_add_u32 v5, v4, 2, s7')
    for j in range(8):
        A('v_add_u32 v6, %d, v5' % ((j & 3) + 8 * (j >> 2)))
        A('v_mul_u32_u24 v6, v6, v3')
        A('v_and_b32 v6, 63, v6')
        A('v_cvt_f32_u32 v6, v6')
        A('v_mul_f32 %s, %s, v6' % (v(16 + j), f32(1.0 / 64)))
    A.put(lsel)
    A('s_cmp_eq_u32 s6, 0')
    A('s_cselect_b64 vcc, -1, 0')
    A('s_cmp_eq_u32 s6, 2')
    A('s_cselect_b32 s7, %s, 1.0' % f32(-1.0))
    for j in range(8):
        A('v_cos_f32 v6, %s' % v(16 + j))
        A('v_sin_f32 v7, %s' % v(16 + j))
        A('v_mul_f32 v7, s7, v7')
        A('v_cndmask_b32 %s, v7, v6, vcc' % v(16 + j))
    for i in range(4):
        A('v_cvt_pk_bf16_f32 %s, %s, %s' % (v(24 + i), v(16 + 2 * i), v(17 + 2 * i)))
    lst = A.label('c2w')
    A('s_branch %s' % lst)
    A.put(ltw)
    A('s_sub_u32 s8, s5, 30')
    A('s_lshr_b32 s6, s8, 4')
    A('s_bfe_u32 s9, s8, 0x10003')
    A('s_bfe_u32 s7, s8, 0x10002')
    A('s_lshl_b32 s7, s7, 5')
    A('s_and_b32 s10, s8, 3')
    A('s_lshl_b32 s10, s10, 3')
    A('v_lshl_add_u32 v5, v4, 2, s10')
    A('s_cmp_eq_u32 s6, 0')
    A('s_cselect_b32 s10, s7, 0')
    A('s_cselect_b32 s11, 0, s7')
    A('s_cselect_b32 s12, 1.0, %s' % f32(1.0 / 2048))
    A('v_add_u32 v3, s10, v3')
    A('v_add_u32 v5, s11, v5')
    A('s_cmp_eq_u32 s9, 0')
    A('s_cselect_b64 vcc, -1, 0')
    for i in range(4):
        A('v_add_u32 v6, %d, v5' % i)
        A('v_mul_u32_u24 v6, v6, v3')
        A('v_cvt_f32_u32 v6, v6')
        A('v_mul_f32 v6, %s, v6' % f32(1.0 / 2048))
        A('v_cos_f32 v7, v6')
        A('v_sin_f32 v8, v6')
        A('v_cndmask_b32 v7, v8, v7, vcc')
        A('v_mul_f32 %s, s12, v7' % v(24 + i))
    A.put(lst)
    A('v_lshlrev_b32 v1, 4, v1')
    A('s_mov_b32 s4, 0x%x' % WS_C2)
    A('buffer_store_dwordx4 v[24:27], v1, s[44:47], s4 offen{SC}')
    A.put(end)


def perm_rowmap(s_base):
    def rm(A, vr, t1, t2):
        A('v_add_u32 %s, %s, %s' % (v(vr), s(s_base), v(vr)))
        A('v_and_b32 %s, 31, %s' % (v(t1), v(vr)))
        A('v_lshrrev_b32 %s, 5, %s' % (v(vr), v(vr)))
        A('v_lshl_add_u32 %s, %s, 6, %s' % (v(vr), v(t1), v(vr)))
    return rm


def a1_tile(A, s_tile, vtid, sc1=False):
    A('s_and_b32 s56, %s, 15' % s(s_tile))
    A('s_lshr_b32 s57, %s, 4' % s(s_tile))
    make_srd(A, 44, P_AX, 2048 * 1280)
    make_srd(A, 52, P_WS, WS_SIZE)
    A('s_lshl_b32 s69, s56, 7')
    A('s_mov_b32 s66, 0')
    A('s_mul_i32 s67, s57, %d' % (128 * 1280))
    A('s_add_u32 s67, s67, 0x%x' % WS_F2)
    A('s_lshl_b32 s68, s57, 19')
    A('s_lshl_b32 s59, s56, 8')
    A('s_add_u32 s68, s68, s59')
    A('s_add_u32 s68, s68, 0x%x' % WS_T)
    opM = Operand('KC', 44, 1280, 66)
    opN = Operand('KC', 52, 1280, 67)
    gemm_tile(A, 2, 2, 640, opM, opN, store_epilogue_bf16(A, 52, 68, 4096, sc1=sc1), vtid, rowmapM=perm_rowmap(69), ldsc1=sc1)


def a3_tile(A, s_tile, vtid, sc1=False):
    A('s_and_b32 s56, %s, 15' % s(s_tile))
    A('s_lshr_b32 s57, %s, 4' % s(s_tile))
    make_srd(A, 44, P_OUT, 2048 * 2560)
    make_srd(A, 52, P_WS, WS_SIZE)
    A('s_lshl_b32 s69, s56, 7')
    A('s_mul_i32 s66, s57, %d' % (128 * 1280))
    A('s_add_u32 s66, s66, 0x%x' % WS_G2)
    A('s_lshl_b32 s67, s56, 8')
    A('s_add_u32 s67, s67, 0x%x' % WS_Z)
    A('s_lshl_b32 s68, s57, 8')
    opM = Operand('KC', 52, 1280, 66)
    opN = Operand('IC', 52, 4096, 67)
    gemm_tile(A, 2, 2, 640, opM, opN, store_epilogue_bf16(A, 44, 68, 2560, rowmap=perm_rowmap(69)), vtid, ldsc1=sc1)


def a2_task(A, s_task, vtid, sc1=False):
    SC = ' sc1' if sc1 else ''
    end = A.label('a2e')
    vl, vw = 1, 2
    A('v_and_b32 v1, 63, %s' % v(vtid))
    A('v_lshrrev_b32 v2, 6, %s' % v(vtid))
    A('v_readfirstlane_b32 s56, v2')
    A('s_lshl_b32 s57, %s, 2' % s(s_task))
    A('s_add_u32 s57, s57, s56')
    A('s_cmp_gt_u32 s57, 320')
    A('s_cbranch_scc1 %s' % end)
    make_srd(A, 52, P_WS, WS_SIZE)
    A('s_cmp_eq_u32 s57, 0')
    A('s_cselect_b32 s58, 0, 1')
    A('s_cmp_eq_u32 s57, 320')
    A('s_cselect_b32 s58, 0, s58')
    FA, FB = 0, 24
    TW1, TW2 = 120, 184
    A('v_lshlrev_b32 v3, 4, v1')
    A('s_mov_b32 s59, 0x%x' % WS_C2)
    D0 = 16
    A('v_and_b32 v4, 31, v1')
    A('v_lshlrev_b32 v4, 6, v4')
    A('v_lshrrev_b32 v5, 5, v1')
    A('v_lshl_add_u32 v4, v5, 4, v4')
    A('s_lshl_b32 s60, s57, 12')
    A('s_add_u32 s60, s60, 0x%x' % WS_T)
    A('s_add_u32 s61, s60, %d' % (320 * 4096))
    for nt in range(2):
        for ks in range(2):
            A('buffer_load_dwordx4 %s, v4, s[52:55], s60 offen offset:%d%s' % (v(D0 + 4 * (nt * 2 + ks), 4), nt * 2048 + ks * 32, SC))
    lz, lz2 = A.label('a2z'), A.label('a2y')
    A('s_cmp_eq_u32 s58, 0')
    A('s_cbranch_scc1 %s' % lz)
    for nt in range(2):
        for ks in range(2):
            A('buffer_load_dwordx4 %s, v4, s[52:55], s61 offen offset:%d%s' % (v(D0 + 16 + 4 * (nt * 2 + ks), 4), nt * 2048 + ks * 32, SC))
    A('s_branch %s' % lz2)
    A.put(lz)
    for i in range(16):
        A('v_mov_b32 %s, 0' % v(D0 + 16 + i))
    A.put(lz2)
    for r in range(C2_ROWS):
        if r % 4 == 0 and r:
            A('s_add_u32 s59, s59, 4096')
        A('buffer_load_dwordx4 %s, v3, s[52:55], s59 offen offset:%d%s' % (a(4 * r, 4), (r % 4) * 1024, SC))
    WR = 176
    A('s_lshl_b32 s59, s57, 13')
    A('s_add_u32 s59, s59, 0x%x' % WS_WT)
    for i in range(8):
        if i == 4:
            A('s_add_u32 s59, s59, 4096')
        A('buffer_load_dwordx4 %s, v3, s[52:55], s59 offen offset:%d%s' % (v(WR + 4 * i, 4), (i % 4) * 1024, SC))
    A('s_lshl_b32 s62, s56, 13')
    A('v_and_b32 v6, 31, v1')
    A('v_lshlrev_b32 v7, 6, v6')
    A('v_lshl_add_u32 v7, v5, 3, v7')
    A('v_add_u32 v7, s62, v7')
    A('v_bfe_u32 v8, v1, 2, 2')
    A('v_lshl_add_u32 v8, v5, 2, v8')
    A('v_lshlrev_b32 v8, 6, v8')
    A('v_bfe_u32 v9, v1, 4, 1')
    A('v_lshl_add_u32 v8, v9, 5, v8')
    A('v_and_b32 v10, 3, v1')
    A('v_lshl_add_u32 v8, v10, 3, v8')
    A('v_add_u32 v8, s62, v8')
    A('v_lshlrev_b32 v11, 7, v6')
    A('v_lshl_add_u32 v11, v5, 3, v11')
    A('v_add_u32 v11, s62, v11')
    A('v_bfe_u32 v12, v1, 2, 2')
    A('v_lshl_add_u32 v12, v5, 3, v12')
    A('v_lshlrev_b32 v12, 7, v12')
    A('v_lshl_add_u32 v12, v9, 5, v12')
    A('v_lshl_add_u32 v12, v10, 3, v12')
    A('v_add_u32 v12, s62, v12')
    ACC = 48
    TMP = 112
    def fa(st, ks): return a(FA + 4 * (st * 2 + ks), 4)
    def fb(st, mt, ks): return a(FB + 4 * (st * 8 + mt * 4 + ks), 4)
    def acc(p, t): return v(ACC + 16 * (p * 2 + t), 16)
    A('s_waitcnt vmcnt(0)')
    def dfr(p, nt, ks): return v(D0 + 16 * p + 4 * (nt * 2 + ks), 4)
    for nt in range(2):
        for p in range(2):
            first = True
            for ks in range(2):
                A('v_mfma_f32_32x32x16_bf16 %s, %s, %s, %s' % (acc(p, nt), fa(0, ks), dfr(p, nt, ks), '0' if first else acc(p, nt)))
                first = False
                A('v_mfma_f32_32x32x16_bf16 %s, %s, %s, %s' % (acc(p, nt), fa(1 if p == 0 else 2, ks), dfr(1 - p, nt, ks), acc(p, nt)))

    def twiddle(TW, sign, vwaddr, toff):
        for t in range(2):
            for r in range(16):
                c, sn = TMP + (r % 4) * 4, TMP + (r % 4) * 4 + 1
                x, y = TMP + (r % 4) * 4 + 2, TMP + (r % 4) * 4 + 3
                yr, yi = ACC + 16 * t + r, ACC + 32 + 16 * t + r
                A('v_accvgpr_read_b32 %s, %s' % (v(c), a(TW + 16 * t + r)))
                A('v_accvgpr_read_b32 %s, %s' % (v(sn), a(TW + 32 + 16 * t + r)))
                A('v_mul_f32 %s, %s, %s' % (v(x), v(yr), v(c)))
                A('v_mul_f32 %s, %s, %s' % (v(y), v(yi), v(c)))
                A('v_fma_f32 %s, %s%s, %s, %s' % (v(x), '-' if sign > 0 else '', v(yi), v(sn), v(x)))
                A('v_fma_f32 %s, %s%s, %s, %s' % (v(yi), '' if sign > 0 else '-', v(yr), v(sn), v(y)))
                A('v_mov_b32 %s, %s' % (v(yr), v(x)))
        for p in range(2):
            for t in range(2):
                for rq in range(4):
                    b = ACC + 16 * (p * 2 + t) + 4 * rq
                    o = TMP + 16 + 2 * (rq & 1) + 4 * (t & 1) + 8 * p
                    A('v_cvt_pk_bf16_f32 %s, %s, %s' % (v(o), v(b), v(b + 1)))
                    A('v_cvt_pk_bf16_f32 %s, %s, %s' % (v(o + 1), v(b + 2), v(b + 3)))
                    A('ds_write_b64 %s, %s offset:%d' % (v(vwaddr), v(o, 2), p * 4096 + t * toff + rq * 16))
        A('s_waitcnt lgkmcnt(0)')
    twiddle(TW1, -1, 7, 2048)
    def bfr(p, ks): return v(D0 + 16 * p + 4 * ks, 4)
    for p in range(2):
        for ks in range(4):
            A('ds_read_b64_tr_b16 %s, v8 offset:%d' % (v(D0 + 16 * p + 4 * ks, 2), p * 4096 + ks * 1024))
            A('ds_read_b64_tr_b16 %s, v8 offset:%d' % (v(D0 + 16 * p + 4 * ks + 2, 2), p * 4096 + ks * 1024 + 512))
    A('s_waitcnt lgkmcnt(0)')
    def big(conj):
        for mt in range(2):
            for p in range(2):
                first = True
                st = (1 if p == 0 else 2) if not conj else (2 if p == 0 else 1)
                for ks in range(4):
                    A('v_mfma_f32_32x32x16_bf16 %s, %s, %s, %s' % (acc(p, mt), fb(0, mt, ks), bfr(p, ks), '0' if first else acc(p, mt)))
                    first = False
                    A('v_mfma_f32_32x32x16_bf16 %s, %s, %s, %s' % (acc(p, mt), fb(st, mt, ks), bfr(1 - p, ks), acc(p, mt)))
    big(False)
    for t in range(2):
        for r in range(16):
            c, sn = TMP + (r % 4) * 4, TMP + (r % 4) * 4 + 1
            x, y = TMP + (r % 4) * 4 + 2, TMP + (r % 4) * 4 + 3
            xr, xi = ACC + 16 * t + r, ACC + 32 + 16 * t + r
            w = WR + 16 * t + r
            A('v_lshlrev_b32 %s, 16, %s' % (v(c), v(w)))
            A('v_and_b32 %s, 0xffff0000, %s' % (v(sn), v(w)))
            A('v_mul_f32 %s, %s, %s' % (v(x), v(xr), v(c)))
            A('v_mul_f32 %s, %s, %s' % (v(y), v(xi), v(c)))
            A('v_fma_f32 %s, -%s, %s, %s' % (v(x), v(xi), v(sn), v(x)))
            A('v_fma_f32 %s, %s, %s, %s' % (v(xi), v(xr), v(sn), v(y)))
            A('v_mov_b32 %s, %s' % (v(xr), v(x)))
    for p in range(2):
        for ks in range(4):
            b = ACC + 16 * (p * 2 + (ks >> 1)) + 8 * (ks & 1)
            for i in range(4):
                A('v_cvt_pk_bf16_f32 %s, %s, %s' % (v(D0 + 16 * p + 4 * ks + i), v(b + 2 * i), v(b + 2 * i + 1)))
    big(True)
    twiddle(TW2, +1, 11, 64)
    for p in range(2):
        for nt in range(2):
            for ks in range(2):
                r = D0 + 16 * p + 4 * (nt * 2 + ks)
                A('ds_read_b64_tr_b16 %s, v12 offset:%d' % (v(r, 2), p * 4096 + ks * 2048 + nt * 64))
                A('ds_read_b64_tr_b16 %s, v12 offset:%d' % (v(r + 2, 2), p * 4096 + ks * 2048 + nt * 64 + 512))
    A('s_waitcnt lgkmcnt(0)')
    for nt in range(2):
        for p in range(2):
            first = True
            for ks in range(2):
                A('v_mfma_f32_32x32x16_bf16 %s, %s, %s, %s' % (acc(p, nt), fa(0, ks), dfr(p, nt, ks), '0' if first else acc(p, nt)))
                first = False
                A('v_mfma_f32_32x32x16_bf16 %s, %s, %s, %s' % (acc(p, nt), fa(2 if p == 0 else 1, ks), dfr(1 - p, nt, ks), acc(p, nt)))
    A('s_lshl_b32 s60, s57, 12')
    A('s_add_u32 s60, s60, 0x%x' % WS_Z)
    A('s_add_u32 s61, s60, %d' % (320 * 4096))
    for p in range(2):
        if p == 1:
            A('s_cmp_eq_u32 s58, 0')
            A('s_cbranch_scc1 %s' % end)
        for nt in range(2):
            b = ACC + 16 * (p * 2 + nt)
            o = TMP + 8 * (p * 2 + nt)
            for i in range(8):
                A('v_cvt_pk_bf16_f32 %s, %s, %s' % (v(o + i), v(b + 2 * i), v(b + 2 * i + 1)))
            A('v_permlane32_swap_b32 %s, %s' % (v(o), v(o + 2)))
            A('v_permlane32_swap_b32 %s, %s' % (v(o + 1), v(o + 3)))
            A('v_permlane32_swap_b32 %s, %s' % (v(o + 4), v(o + 6)))
            A('v_permlane32_swap_b32 %s, %s' % (v(o + 5), v(o + 7)))
            A('buffer_store_dwordx4 %s, v4, s[52:55], %s offen offset:%d%s' % (v(o, 4), 's60' if p == 0 else 's61', nt * 2048, SC))
            A('buffer_store_dwordx4 %s, v4, s[52:55], %s offen offset:%d%s' % (v(o + 4, 4), 's60' if p == 0 else 's61', nt * 2048 + 32, SC))
    A.put(end)
```

```python
from asmlib import Asm, v, a, s
from common import *
from gemm import Operand, gemm_tile, store_epilogue_bf16


def qkv_tile(A, s_tile, vtid, sc1=False):
    A('s_lshr_b32 s56, %s, 6' % s(s_tile))
    A('s_lshl_b32 s56, s56, 3')
    A('s_and_b32 s57, %s, 7' % s(s_tile))
    A('s_add_u32 s56, s56, s57')
    A('s_lshr_b32 s57, %s, 3' % s(s_tile))
    A('s_and_b32 s57, s57, 7')
    A('s_lshr_b32 s58, s56, 4')
    A('s_and_b32 s56, s56, 15')
    A('s_cmp_eq_u32 s58, 1')
    A('s_cselect_b32 s44, %s, %s' % (s(P_WK), s(P_WQ)))
    A('s_cselect_b32 s45, %s, %s' % (s(P_WK + 1), s(P_WQ + 1)))
    A('s_cmp_eq_u32 s58, 2')
    A('s_cselect_b32 s44, %s, s44' % s(P_WV))
    A('s_cselect_b32 s45, %s, s45' % s(P_WV + 1))
    A('s_and_b32 s45, s45, 0xffff')
    A('s_mov_b32 s46, 0x%x' % (640 * 8192))
    A('s_mov_b32 s47, 0x00020000')
    make_srd(A, 48, P_BX, 2048 * 1280)
    make_srd(A, 52, P_WS, WS_SIZE)
    A('s_lshl_b32 s66, s56, 9')
    A('s_mul_i32 s67, s57, %d' % (256 * 1280))
    A('s_lshl_b32 s68, s58, 24')
    A('s_lshl_b32 s59, s57, 21')
    A('s_add_u32 s68, s68, s59')
    A('s_add_u32 s68, s68, s66')
    opM = Operand('IC', 44, 8192, 66)
    opN = Operand('KC', 48, 1280, 67)
    gemm_tile(A, 4, 4, 640, opM, opN, store_epilogue_bf16(A, 52, 68, 8192, sc1=sc1), vtid)
```

```python
import sys, os
from asmlib import Asm, v, a, s
from common import *
import gemm
gemm.STAMP = False
from k_qkv import qkv_tile
from k_chain2 import *
from k_parta import *
from k_attn import *

launches = []
descs = []
A = Asm()

def hdr():
    h = open('cdna_kernels/%s.s.ref' % NAME).read().split('\n')
    out = []
    for l in h:
        if l.startswith('; Override launch'):
            break
        out.append(l)
    return '\n'.join(out) + '\n'

def simple_kernel(name, n, body, lds, vg=512, ac=256):
    kernel_begin(A, name)
    e = A.label('kend')
    A('s_cmp_ge_u32 s2, %d' % n)
    A('s_cbranch_scc1 %s' % e)
    load_ptrs(A)
    body()
    A.put(e)
    A('s_endpgm')
    descs.append(kernel_desc(name, vg, ac))
    launches.append('; @launch kernel=%s grid=(%d,1,1) block=(256,1,1) lds=%d' % (name, n, lds))

kernel_begin(A, 'init_kernel')
ring_init(A)
descs.append(kernel_desc('init_kernel', 32, 32))
launches.append('; @launch kernel=init_kernel grid=(%d,1,1) block=(256,1,1) lds=0' % (RING_BYTES // 4096))

def prep_body():
    make_srd(A, 44, P_WS, WS_SIZE)
    make_srd(A, 48, P_WR, 2048 * 642)
    make_srd(A, 52, P_WI, 2048 * 642)
    l1, l2, le = A.label('pp'), A.label('pp'), A.label('pp')
    A('s_cmp_ge_u32 s2, %d' % PREP_WG_F)
    A('s_cbranch_scc1 %s' % l1)
    prep_f2g2(A, 2)
    A('s_branch %s' % le)
    A.put(l1)
    A('s_sub_u32 s2, s2, %d' % PREP_WG_F)
    A('s_cmp_ge_u32 s2, %d' % PREP_WG_W)
    A('s_cbranch_scc1 %s' % l2)
    prep_wt(A, 2)
    A('s_branch %s' % le)
    A.put(l2)
    A('s_sub_u32 s2, s2, %d' % PREP_WG_W)
    prep_c2(A, 2)
    A.put(le)
simple_kernel('prep_kernel', PREP_WG_F + PREP_WG_W + PREP_WG_C, prep_body, 0, 32, 32)
simple_kernel('qkv_kernel', 384, lambda: qkv_tile(A, 2, 0), 131072)
kernel_begin(A, 'chain_kernel')
chain_kernel(A, stamps=bool(os.environ.get('STAMPSET')))
descs.append(kernel_desc('chain_kernel'))
launches.append('; @launch kernel=chain_kernel grid=(256,1,1) block=(256,1,1) lds=%d' % L_END)
simple_kernel('a1_kernel', 80, lambda: a1_tile(A, 2, 0), 65536)
simple_kernel('a2_kernel', 81, lambda: a2_task(A, 2, 0), 32768)
simple_kernel('a3_kernel', 80, lambda: a3_tile(A, 2, 0), 65536)
simple_kernel('attn_kernel', 512, lambda: attn_task(A, 2, 0), 32768, 256, 256)
simple_kernel('oproj_kernel', 160, lambda: oproj_tile(A, 2, 0), 49152)

A.lines = [l.replace('{SC}', '') for l in A.lines]
txt = hdr() + '\n'.join(launches) + '\n.amdgcn_target "amdgcn-amd-amdhsa--gfx950"\n' + A.text() + ''.join(descs)
open(sys.argv[1] if len(sys.argv) > 1 else 'out.s', 'w').write(txt)
```

```python
import re

REG_RE = re.compile(r'\b([vas])(\d+)\b|\b([vas])\[(\d+):(\d+)\]|\b(vcc_lo|vcc_hi|vcc|exec_lo|exec_hi|exec|m0|scc)\b')


def regs_of(op):
    out = set()
    for m in REG_RE.finditer(op):
        if m.group(1):
            out.add(m.group(1) + m.group(2))
        elif m.group(3):
            for i in range(int(m.group(4)), int(m.group(5)) + 1):
                out.add(m.group(3) + str(i))
        else:
            n = m.group(6)
            if n.startswith('vcc'):
                out.add('vcc')
            elif n.startswith('exec'):
                out.add('exec')
            else:
                out.add(n)
    return out


def split_ops(s):
    ops, depth, cur = [], 0, ''
    for ch in s:
        if ch == '[' or ch == '(':
            depth += 1
        if ch == ']' or ch == ')':
            depth -= 1
        if ch == ',' and depth == 0:
            ops.append(cur.strip())
            cur = ''
        else:
            cur += ch
    if cur.strip():
        ops.append(cur.strip())
    return ops


TRANS = ('v_exp_f32', 'v_log_f32', 'v_rcp_f32', 'v_rsq_f32', 'v_sqrt_f32', 'v_sin_f32', 'v_cos_f32',
         'v_rcp_iflag_f32')


def mfma_passes(mn):
    if '32x32x16' in mn or '32x32x8' in mn or '32x32x32_bf16' in mn:
        return 8
    if '16x16x32' in mn or '16x16x16' in mn or '16x16x64_bf16' in mn:
        return 4
    raise ValueError('unknown mfma ' + mn)


class Ins:
    __slots__ = ('text', 'mn', 'kind', 'wr', 'rd', 'srcC', 'passes', 'states', 'target', 'label', 'dpp',
                 'lds_dma', 'wide_store_data', 'sgpr_rd_valu', 'lane_sel')

    def __init__(self, text):
        self.text = text
        self.label = None
        self.target = None
        self.kind = 'other'
        self.wr = set()
        self.rd = set()
        self.srcC = set()
        self.passes = 0
        self.states = 1
        self.dpp = False
        self.lds_dma = False
        self.wide_store_data = set()
        self.lane_sel = set()
        t = text.split(';')[0].strip()
        if t.endswith(':'):
            self.kind = 'label'
            self.label = t[:-1]
            self.states = 0
            self.mn = ''
            return
        if not t or t.startswith('.'):
            self.kind = 'none'
            self.states = 0
            self.mn = ''
            return
        parts = t.split(None, 1)
        mn = parts[0]
        self.mn = mn
        rest = parts[1] if len(parts) > 1 else ''
        ops = split_ops(rest)
        R = [regs_of(o) for o in ops]
        if mn == 's_nop':
            self.kind = 'nop'
            self.states = int(ops[0], 0) + 1
            return
        if mn.startswith('s_cbranch') or mn == 's_branch':
            self.kind = 'branch'
            self.target = ops[0]
            return
        if mn.startswith('v_mfma') or mn.startswith('v_smfmac'):
            self.kind = 'mfma'
            self.passes = mfma_passes(mn)
            self.wr = set(R[0])
            if mn.startswith('v_smfmac'):
                self.srcC = set(R[0])
                self.rd = R[1] | R[2] | R[3]
            else:
                self.srcC = set(R[3])
                self.rd = R[1] | R[2]
            return
        if mn.startswith('v_'):
            self.kind = 'valu'
            if 'dpp' in mn or 'row_' in rest or 'quad_perm' in rest:
                self.dpp = True
            if mn.startswith('v_cmp'):
                self.wr = set(R[0])
                if mn.startswith('v_cmpx'):
                    self.wr.add('exec')
                for r in R[1:]:
                    self.rd |= r
            elif mn.startswith('v_permlane'):
                self.wr = R[0] | R[1]
                self.rd = R[0] | R[1]
            elif mn.startswith('v_add_co') or mn.startswith('v_sub_co') or mn.startswith('v_addc_co') or mn.startswith('v_subb_co') or mn.startswith('v_mad_u64'):
                self.wr = R[0] | R[1]
                for r in R[2:]:
                    self.rd |= r
            elif mn == 'v_nop':
                pass
            else:
                self.wr = set(R[0])
                for r in R[1:]:
                    self.rd |= r
                if mn.startswith('v_fmac') or mn.startswith('v_pk_fmac') or mn.startswith('v_dot2c') or mn.startswith('v_writelane'):
                    self.rd |= R[0]
                if mn.startswith('v_cndmask') and len(ops) == 3:
                    self.rd.add('vcc')
                if (mn.startswith('v_readlane') or mn.startswith('v_writelane')) and len(R) > 2:
                    self.lane_sel = set(R[2])
            return
        if mn.startswith('ds_'):
            self.kind = 'ds'
            if mn.startswith('ds_read') or mn.startswith('ds_bpermute') or mn.startswith('ds_permute') or mn.startswith('ds_swizzle') or '_rtn' in mn:
                self.wr = set(R[0])
                for r in R[1:]:
                    self.rd |= r
            else:
                for r in R:
                    self.rd |= r
            return
        if mn.startswith('global_') or mn.startswith('buffer_') or mn.startswith('flat_'):
            self.kind = 'vmem'
            words = rest.replace(',', ' ').split()
            is_lds = ('lds' in words) or ('_lds_' in mn)
            if is_lds:
                self.lds_dma = True
                for r in R:
                    self.rd |= r
                self.rd.add('m0')
            elif '_load' in mn:
                self.wr = set(R[0])
                for r in R[1:]:
                    self.rd |= r
            elif '_atomic' in mn:
                if 'sc0' in words:
                    self.wr = set(R[0])
                    for r in (R[1:] if mn.startswith('global') else R):
                        self.rd |= r
                else:
                    for r in R:
                        self.rd |= r
            elif '_store' in mn:
                for r in R:
                    self.rd |= r
                if 'x4' in mn or 'x3' in mn:
                    self.wide_store_data = set(R[1] if mn.startswith('global') or mn.startswith('flat') else R[0])
            else:
                for r in R:
                    self.rd |= r
            return
        if mn.startswith('s_'):
            self.kind = 'salu'
            if mn.startswith('s_load') or mn.startswith('s_buffer_load') or mn.startswith('s_memtime') or mn.startswith('s_memrealtime'):
                self.kind = 'smem'
                self.wr = set(R[0])
                for r in R[1:]:
                    self.rd |= r
            elif mn.startswith('s_cmp') or mn.startswith('s_bitcmp') or mn in ('s_waitcnt', 's_barrier', 's_sleep', 's_setprio', 's_endpgm', 's_sendmsg', 's_setpc_b64'):
                for r in R:
                    self.rd |= r
            else:
                if R:
                    self.wr = set(R[0])
                for r in R[1:]:
                    self.rd |= r
                if 'saveexec' in mn:
                    self.wr.add('exec')
            return


def is_vec(r):
    return r[0] in 'va' and r[1:].isdigit()


def is_sgpr(r):
    return (r[0] == 's' and r[1:].isdigit()) or r == 'vcc'


XDL_VALU = {2: 5, 4: 8, 8: 12, 16: 20}
XDL_COVL = {2: 4, 4: 6, 8: 10, 16: 18}
XDL_WARC = {2: 1, 4: 3, 8: 7, 16: 15}


def need(p, c):
    n = 0
    if p.kind == 'mfma':
        D = p.wr
        if c.kind == 'mfma':
            if D & c.rd:
                n = max(n, XDL_VALU[p.passes])
            if D & c.srcC:
                if D == c.srcC and p.passes == c.passes:
                    n = max(n, 0 if p.passes > 2 else 2)
                else:
                    n = max(n, XDL_COVL[p.passes])
            elif D & c.wr:
                n = max(n, XDL_COVL[p.passes])
        elif c.kind in ('valu',):
            if D & (c.rd | c.wr):
                n = max(n, XDL_VALU[p.passes])
            if p.srcC & c.wr:
                n = max(n, XDL_WARC[p.passes])
        elif c.kind in ('vmem', 'ds'):
            if D & (c.rd | c.wr):
                n = max(n, XDL_VALU[p.passes])
            if p.srcC & c.wr:
                n = max(n, XDL_VALU[p.passes])
    elif p.kind == 'valu':
        vw = {r for r in p.wr if is_vec(r)}
        sw = {r for r in p.wr if is_sgpr(r)}
        if c.kind == 'mfma':
            if vw & (c.rd | c.srcC):
                n = max(n, 2)
            if 'exec' in p.wr:
                n = max(n, 4)
        if c.kind == 'valu':
            if sw & c.rd:
                n = max(n, 2)
            if sw & c.lane_sel:
                n = max(n, 4)
            if vw & c.rd:
                if c.dpp:
                    n = max(n, 2)
                if c.mn.startswith('v_permlane'):
                    n = max(n, 2)
                if c.mn.startswith('v_readlane') or c.mn.startswith('v_readfirstlane'):
                    n = max(n, 1)
                if p.mn.replace('_e32', '').replace('_e64', '') in TRANS:
                    n = max(n, 1)
                if p.mn.startswith('v_dot') and not (c.mn == p.mn):
                    n = max(n, 3)
                if p.mn.startswith('v_dot') and c.mn == p.mn:
                    n = max(n, 3)
            if p.mn.startswith('v_dot') and (vw & c.wr) and c.mn != p.mn:
                n = max(n, 3)
            if 'exec' in p.wr:
                n = max(n, 5)
        if c.kind == 'vmem':
            if sw & c.rd:
                n = max(n, 5)
        if c.kind == 'salu' or c.kind == 'smem' or c.kind == 'branch':
            if sw & c.rd:
                n = max(n, 1)
        if c.kind == 'branch' and 'vcc' in c.mn and 'vcc' in p.wr:
            n = max(n, 1)
    elif p.kind == 'salu':
        if 'm0' in p.wr and (c.lds_dma or 'm0' in c.rd):
            n = max(n, 1)
    elif p.kind == 'vmem':
        if p.wide_store_data and (p.wide_store_data & c.wr):
            n = max(n, 2)
    return n


MAXW = 20


def fix_hazards(lines):
    ins = [Ins(l) for l in lines]
    out = []
    for c in ins:
        if c.kind not in ('none', 'label', 'nop'):
            dist = 0
            req = 0
            for p in reversed(out):
                if dist >= MAXW:
                    break
                if p.kind == 'branch' and p.mn == 's_branch':
                    break
                if p.mn in ('s_endpgm', 's_setpc_b64'):
                    break
                k = need(p, c) - dist
                if k > req:
                    req = k
                dist += p.states
            while req > 0:
                k = min(req, 16)
                out.append(Ins('    s_nop %d' % (k - 1)))
                req -= k
        out.append(c)
    changed = True
    startbi = 0
    while changed:
        changed = False
        labels = {x.label: i for i, x in enumerate(out) if x.kind == 'label'}
        for bi in range(startbi, len(out)):
            b = out[bi]
            if b.kind != 'branch' or b.target not in labels:
                continue
            li = labels[b.target]
            req = 0
            dc = 0
            j = li
            while j < len(out) and dc < MAXW:
                c = out[j]
                if c.kind not in ('none', 'label', 'nop'):
                    dist = dc
                    for pi in range(bi, -1, -1):
                        p = out[pi]
                        if dist >= MAXW:
                            break
                        if pi != bi and p.kind == 'branch' and p.mn == 's_branch':
                            break
                        if pi != bi:
                            k = need(p, c) - dist
                            if k > req:
                                req = k
                        dist += p.states
                    if c.kind == 'branch' and c.mn == 's_branch':
                        break
                dc += c.states
                j += 1
            if req > 0:
                k = min(req, 16)
                out.insert(bi, Ins('    s_nop %d' % (k - 1)))
                changed = True
                startbi = bi
                break
    return [x.text for x in out]


class Asm:
    def __init__(self):
        self.lines = []
        self._lab = 0

    def __call__(self, s):
        for l in s.split('\n'):
            l = l.strip()
            if l:
                self.lines.append(('    ' + l) if not l.endswith(':') else l)

    def raw(self, s):
        self.lines.append(s)

    def label(self, base='L'):
        self._lab += 1
        return '.%s_%d' % (base, self._lab)

    def put(self, lab):
        self.lines.append(lab + ':')

    def text(self):
        return '\n'.join(fix_hazards(self.lines)) + '\n'


def v(i, n=1):
    return 'v%d' % i if n == 1 else 'v[%d:%d]' % (i, i + n - 1)


def a(i, n=1):
    return 'a%d' % i if n == 1 else 'a[%d:%d]' % (i, i + n - 1)


def s(i, n=1):
    return 's%d' % i if n == 1 else 's[%d:%d]' % (i, i + n - 1)
```

```python
from asmlib import Asm, v, a, s
from common import *

OS_LDS = 131072 + 16384


def ostream(A, s_id, wait_fn=None, sc1=False, ngrp=2):
    SC = ' sc1' if sc1 else ''
    S_W, S_OB, S_SEG, S_T0, S_T1, S_LB, S_CH, S_BUF = 56, 57, 58, 59, 60, 61, 62, 63
    A('v_and_b32 v1, 63, v0')
    A('v_lshrrev_b32 v2, 6, v0')
    A('v_readfirstlane_b32 %s, v2' % s(S_W))
    A('s_mul_i32 %s, %s, 3277' % (s(S_SEG), s(s_id)))
    A('s_lshr_b32 %s, %s, 16' % (s(S_SEG), s(S_SEG)))
    A('s_mul_i32 %s, %s, 20' % (s(S_T0), s(S_SEG)))
    A('s_sub_u32 %s, %s, %s' % (s(S_OB), s(s_id), s(S_T0)))
    make_srd(A, 44, P_WO, 4096 * 1280)
    make_srd(A, 48, P_OUT, 2048 * 2560)
    make_srd(A, 52, P_WS, WS_SIZE)
    A('s_lshl_b32 %s, %s, 15' % (s(S_LB), s(S_W)))
    A('v_lshrrev_b32 v3, 2, v1')
    A('v_mul_u32_u24 v3, 1280, v3')
    A('v_and_b32 v4, 3, v1')
    A('v_lshl_add_u32 v3, v4, 4, v3')
    A('s_mul_i32 %s, %s, %d' % (s(S_T0), s(S_W), 1024 * 1280))
    A('s_lshl_b32 %s, %s, 6' % (s(S_T1), s(S_OB)))
    A('s_add_u32 %s, %s, %s' % (s(S_T0), s(S_T0), s(S_T1)))
    A('v_lshrrev_b32 v5, 5, v1')
    A('v_bfe_u32 v6, v1, 2, 2')
    A('v_lshl_add_u32 v6, v5, 3, v6')
    A('v_lshlrev_b32 v6, 6, v6')
    A('v_bfe_u32 v7, v1, 4, 1')
    A('v_lshl_add_u32 v6, v7, 5, v6')
    A('v_lshl_add_u32 v6, v4, 3, v6')
    A('v_add_u32 v6, %s, v6' % s(S_LB))
    for half in range(2):
        for ch in range(2):
            for i in range(16):
                A('s_add_u32 m0, %s, %d' % (s(S_LB), ch * 16384 + i * 1024))
                A('s_add_u32 %s, %s, %d' % (s(S_T1), s(S_T0), ((half * 2 + ch) * 256 + i * 16) * 1280))
                A('buffer_load_dwordx4 v3, s[44:47], %s offen lds' % s(S_T1))
        A('s_waitcnt vmcnt(0)')
        for ch in range(2):
            for ks in range(16):
                r = ((half * 2 + ch) * 16 + ks) * 4
                A('ds_read_b64_tr_b16 %s, v6 offset:%d' % (a(r, 2), ch * 16384 + ks * 1024))
                A('ds_read_b64_tr_b16 %s, v6 offset:%d' % (a(r + 2, 2), ch * 16384 + ks * 1024 + 256))
            A('s_waitcnt lgkmcnt(0)')
    A('v_and_b32 v8, 31, v1')
    A('v_xor_b32 v8, v8, v5')
    A('v_lshlrev_b32 v8, 4, v8')
    A('v_lshl_add_u32 v8, v5, 13, v8')
    for i in range(8):
        A('v_xor_b32 %s, %d, v8' % (v(16 + i), (2 * i) << 4))
    A('v_and_b32 v9, 31, v1')
    A('v_and_b32 v10, 15, v1')
    A('v_xor_b32 v10, v10, v5')
    A('v_lshlrev_b32 v10, 4, v10')
    A('v_lshl_add_u32 v10, v9, 9, v10')
    A('v_add_u32 v10, %s, v10' % s(S_LB))
    A('v_lshlrev_b32 v11, 4, v1')
    A('s_lshl_b32 %s, %s, 12' % (s(S_T0), s(S_W)))
    A('s_add_u32 %s, %s, 131072' % (s(S_T0), s(S_T0)))
    A('v_add_u32 v12, %s, v11' % s(S_T0))
    A('s_lshl_b32 %s, %s, 10' % (s(S_T0), s(S_W)))
    A('s_add_u32 %s, %s, 131072' % (s(S_T0), s(S_T0)))
    A('v_add_u32 v13, %s, v11' % s(S_T0))
    A('v_mul_u32_u24 v14, 2560, v9')
    A('v_lshl_add_u32 v14, v5, 3, v14')
    A('s_lshl_b32 %s, %s, 6' % (s(S_T0), s(S_OB)))
    A('s_lshl_b32 %s, %s, 4' % (s(S_T1), s(S_W)))
    A('s_add_u32 %s, %s, %s' % (s(S_T0), s(S_T0), s(S_T1)))
    A('s_add_u32 %s, %s, 1280' % (s(S_T0), s(S_T0)))
    A('v_add_u32 v14, %s, v14' % s(S_T0))

    def dma(ch):
        L = []
        for i in range(16):
            L.append(['s_add_u32 m0, %s, %d' % (s(S_LB), (ch & 1) * 16384 + i * 1024),
                      's_add_u32 %s, %s, %d' % (s(S_T1), s(S_T0), i * 2 * 8192 + ch * 512),
                      'buffer_load_dwordx4 %s, s[52:55], %s offen lds%s' % (v(16 + (i & 7)), s(S_T1), SC)])
        return L
    loop = A.label('os')
    A.put(loop)
    if wait_fn:
        wait_fn(A, S_SEG)
    A('s_lshl_b32 %s, %s, 18' % (s(S_T0), s(S_SEG)))
    A('s_lshl_b32 %s, %s, 11' % (s(S_T1), s(S_W)))
    A('s_add_u32 %s, %s, %s' % (s(S_T0), s(S_T0), s(S_T1)))
    A('s_add_u32 %s, %s, 0x%x' % (s(S_T0), s(S_T0), WS_O))
    for ch in range(2):
        for g in dma(ch):
            for x in g:
                A(x)
    ACC, BF = 32, 64
    for ch in range(4):
        A('s_waitcnt vmcnt(%d)' % (16 if ch < 3 else 0))
        for ks in range(16):
            A('v_xor_b32 %s, %d, v10' % (v(24 + (ks & 3)), ks << 5))
            A('ds_read_b128 %s, %s offset:%d' % (v(BF + 4 * ks, 4), v(24 + (ks & 3)), (ch & 1) * 16384))
        A('s_waitcnt lgkmcnt(0)')
        nxt = dma(ch + 2) if ch < 2 else []
        for ks in range(16):
            A('v_mfma_f32_32x32x16_bf16 %s, %s, %s, %s' % (v(ACC, 16), a((ch * 16 + ks) * 4, 4), v(BF + 4 * ks, 4), '0' if (ch == 0 and ks == 0) else v(ACC, 16)))
            if nxt:
                for x in nxt.pop(0):
                    A(x)
    for rq in range(4):
        A('ds_write_b128 v12, %s offset:%d' % (v(ACC + 4 * rq, 4), rq * 1024))
    A('s_waitcnt lgkmcnt(0)')
    A('s_barrier')
    for w in range(4):
        A('ds_read_b128 %s, v13 offset:%d' % (v(BF + 4 * w, 4), w * 4096))
    A('s_waitcnt lgkmcnt(0)')
    A('s_barrier')
    for i in range(4):
        A('v_add_f32 %s, %s, %s' % (v(BF + i), v(BF + i), v(BF + 4 + i)))
        A('v_add_f32 %s, %s, %s' % (v(BF + 8 + i), v(BF + 8 + i), v(BF + 12 + i)))
    for i in range(4):
        A('v_add_f32 %s, %s, %s' % (v(BF + i), v(BF + i), v(BF + 8 + i)))
    A('v_cvt_pk_bf16_f32 %s, %s, %s' % (v(BF), v(BF), v(BF + 1)))
    A('v_cvt_pk_bf16_f32 %s, %s, %s' % (v(BF + 1), v(BF + 2), v(BF + 3)))
    A('s_mul_i32 %s, %s, %d' % (s(S_T0), s(S_SEG), 32 * 2560))
    A('buffer_store_dwordx2 %s, v14, s[48:51], %s offen' % (v(BF, 2), s(S_T0)))
    A('s_add_u32 %s, %s, %d' % (s(S_SEG), s(S_SEG), ngrp))
    A('s_cmp_lt_u32 %s, 64' % s(S_SEG))
    A('s_cbranch_scc1 %s' % loop)
```

```python
import sys, os
from asmlib import Asm, v, a, s
from common import *
import gemm
gemm.STAMP = False
from gemm import Operand, gemm_tile, store_epilogue_bf16
import importlib
KC = importlib.import_module(os.environ.get('CHAIN', 'k_chain11'))
globals().update({k: getattr(KC, k) for k in dir(KC) if not k.startswith('__')})
from k_parta import *
from k_attn import *
from k_ostream import *

launches = []
descs = []
A = Asm()

def hdr():
    h = open('cdna_kernels/%s.s.ref' % NAME).read().split('\n')
    out = []
    for l in h:
        if l.startswith('; Override launch'):
            break
        out.append(l)
    return '\n'.join(out) + '\n'

D_H, D_V, D_SLOW, D_Q, D_PROG, D_PREP, D_A1, D_A2 = [4 * i for i in range(8)]
D_KV = 32
D_QD = 80
D_O = 112
D_AQ = 120
D_SLOWV = 124
NAT = int(os.environ.get('NAT', 32))
R_CNT = WS_RING + 49152
NPREP_V = PREP_WG_F + PREP_WG_W + PREP_WG_C
NPREP = (NPREP_V + 7) // 8
NGRP = int(os.environ.get('NGRP', 3))
NV, NO = 32, 20 * NGRP

NINIT_V = RING_BYTES // 4096
NINIT = (NINIT_V + 7) // 8
D_INIT = 116
R_KVM = R_CNT + 256

kernel_begin(A, 'main_kernel')
abort, done = A.label('abort'), A.label('done')
S_TASK, S_A, S_B, S_C = 72, 73, 74, 75
S_KVOK = 99


def wait_ge(A, base_pair, off_sgpr, thr_sgpr, vt, signed=False, sleep=4, wg=False):
    lp, ok = A.label('wl'), A.label('wo')
    if wg:
        A('v_readfirstlane_b32 %s, v0' % s(S_T3))
        A('s_cmp_ge_u32 %s, 64' % s(S_T3))
        A('s_cbranch_scc1 %s' % ok)
    A('v_mov_b32 %s, %s' % (v(vt), s(off_sgpr)))
    A('s_mov_b32 %s, 0' % s(S_SPIN))
    A.put(lp)
    A('global_load_dword %s, %s, %s sc1' % (v(vt + 1), v(vt), s(base_pair, 2)))
    A('s_waitcnt vmcnt(0)')
    A('v_readfirstlane_b32 %s, %s' % (s(S_T3), v(vt + 1)))
    A('s_cmp_ge_%s %s, %s' % ('i32' if signed else 'u32', s(S_T3), s(thr_sgpr)))
    A('s_cbranch_scc1 %s' % ok)
    A('s_sleep %d' % sleep)
    A('s_add_u32 %s, %s, 1' % (s(S_SPIN), s(S_SPIN)))
    A('s_cmp_lt_u32 %s, %d' % (s(S_SPIN), SPIN_MAX))
    A('s_cbranch_scc1 %s' % lp)
    A('s_branch %s' % abort)
    A.put(ok)
    if wg:
        A('s_barrier')


def signal(A, base_pair, off_sgpr):
    A('s_waitcnt vmcnt(0)')
    A('s_barrier')
    A('v_mov_b32 v1, %s' % s(off_sgpr))
    A('v_mov_b32 v2, 1')
    A('v_cmp_eq_u32 vcc, 0, v0')
    A('s_and_saveexec_b64 s[6:7], vcc')
    l = A.label('sg')
    A('s_cbranch_execz %s' % l)
    A('global_atomic_add v1, v2, %s' % s(base_pair, 2))
    A.put(l)
    A('s_mov_b64 exec, s[6:7]')


def kv_index(A, seg, dst, last):
    A('s_lshr_b32 %s, %s, 1' % (s(dst), s(seg)))
    A('s_or_b32 %s, %s, 1' % (s(last), s(seg)))
    l = A.label('kvi')
    A('s_cmp_lt_u32 %s, 8' % s(seg))
    A('s_cbranch_scc1 %s' % l)
    A('s_lshr_b32 %s, %s, 3' % (s(dst), s(seg)))
    A('s_add_u32 %s, %s, 3' % (s(dst), s(dst)))
    A('s_or_b32 %s, %s, 7' % (s(last), s(seg)))
    A.put(l)
    A('s_lshl_b32 %s, %s, 2' % (s(dst), s(dst)))
    A('s_add_u32 %s, %s, %d' % (s(dst), s(dst), D_KV))


def chain_kv_wait(A, seg):
    ok, lp = A.label('kvok'), A.label('kvl')
    A('s_cmp_lt_i32 %s, %s' % (s(S_KVOK), s(seg)))
    A('s_cbranch_scc0 %s' % ok)
    A('v_mbcnt_lo_u32_b32 v36, -1, 0')
    A('v_min_u32 v36, 10, v36')
    A('v_lshlrev_b32 v36, 2, v36')
    A('s_mov_b32 %s, 0' % s(S_SPIN))
    A.put(lp)
    A('global_load_dword v37, v36, %s offset:%d sc1' % (s(P_DBG, 2), D_KV))
    A('s_waitcnt vmcnt(0)')
    A('v_cmp_le_u32 vcc, 32, v37')
    A('s_and_b32 %s, vcc_lo, 0x7ff' % s(S_T1))
    A('s_ff0_i32_b32 %s, %s' % (s(S_T1), s(S_T1)))
    A('s_lshl_b32 %s, %s, 1' % (s(S_T2), s(S_T1)))
    A('s_sub_u32 %s, %s, 3' % (s(S_T3), s(S_T1)))
    A('s_lshl_b32 %s, %s, 3' % (s(S_T3), s(S_T3)))
    A('s_cmp_le_u32 %s, 4' % s(S_T1))
    A('s_cselect_b32 %s, %s, %s' % (s(S_KVOK), s(S_T2), s(S_T3)))
    A('s_sub_u32 %s, %s, 1' % (s(S_KVOK), s(S_KVOK)))
    A('s_cmp_lt_i32 %s, %s' % (s(S_KVOK), s(seg)))
    A('s_cbranch_scc0 %s' % ok)
    A('s_sleep 4')
    A('s_add_u32 %s, %s, 1' % (s(S_SPIN), s(S_SPIN)))
    A('s_cmp_lt_u32 %s, %d' % (s(S_SPIN), SPIN_MAX))
    A('s_cbranch_scc1 %s' % lp)
    A('s_branch %s' % abort)
    A.put(ok)


def chain_init_wait():
    A('s_mov_b32 %s, %d' % (s(S_T1), D_INIT))
    A('s_mov_b32 %s, %d' % (s(S_T2), NINIT))
    wait_ge(A, P_DBG, S_T1, S_T2, 2, sleep=2)


def chain_prog_add(A):
    l = A.label('pa')
    A('s_cmp_lg_u32 %s, 3' % s(S_WV))
    A('s_cbranch_scc1 %s' % l)
    A('s_mov_b64 exec, 1')
    A('v_mov_b32 v36, %d' % D_PROG)
    A('v_mov_b32 v37, 1')
    A('global_atomic_add v36, v37, %s' % s(P_DBG, 2))
    A('s_mov_b64 exec, -1')
    A.put(l)


lattn = A.label('attnq')
lh, lv, lo, los, lwork = A.label('hrole'), A.label('vrole'), A.label('other'), A.label('orole'), A.label('work')
A('s_cmp_ge_u32 s2, 256')
A('s_cbranch_scc1 %s' % done)
load_ptrs(A)
A('s_getreg_b32 s3, hwreg(HW_REG_XCC_ID)')
A('s_and_b32 s3, s3, 7')
A('s_cmp_lg_u32 s3, %d' % int(os.environ.get('HXCD', 0)))
A('s_cbranch_scc1 %s' % lo)
bcast_atomic(A, D_H, 1, S_H)
A('s_cmp_lt_u32 %s, 32' % s(S_H))
A('s_cbranch_scc1 %s' % lh)
A.put(lo)
lo2 = A.label('other2')
A('s_cmp_lg_u32 s3, %d' % int(os.environ.get('VXCD', 1)))
A('s_cbranch_scc1 %s' % lo2)
bcast_atomic(A, D_V, 1, S_H)
A('s_cmp_lt_u32 %s, %d' % (s(S_H), NV))
A('s_cbranch_scc1 %s' % lv)
A.put(lo2)
bcast_atomic(A, D_O, 1, S_H)
A('s_cmp_lt_u32 %s, %d' % (s(S_H), NO))
A('s_cbranch_scc1 %s' % los)
A('s_cmp_lt_u32 %s, %d' % (s(S_H), NO + NAT))
A('s_cbranch_scc1 %s' % lattn)
A('s_mov_b32 s76, 0')
A('s_mov_b32 s77, 0')
A.put(lwork)
lchk = A.label('chk')
A('s_cmp_lg_u32 s76, 0')
A('s_cbranch_scc1 %s' % lchk)
A('s_cmp_gt_u32 s77, %d' % NINIT)
A('s_cselect_b32 s76, 1, 0')
A.put(lchk)
lnc = A.label('nc')
A('s_cmp_lg_u32 s76, 1')
A('s_cbranch_scc1 %s' % lnc)
bcast_atomic(A, D_H, 0, S_T0)
A('s_cmp_ge_u32 %s, 32' % s(S_T0))
A('s_cbranch_scc1 %s' % lnc)
bcast_atomic(A, D_SLOW, 1, S_T0)
bcast_atomic(A, D_H, 1, S_H)
A('s_cmp_lt_u32 %s, 32' % s(S_H))
A('s_cbranch_scc1 %s' % lh)
A.put(lnc)
lnc2 = A.label('nc2')
A('s_cmp_lg_u32 s76, 1')
A('s_cbranch_scc1 %s' % lnc2)
bcast_atomic(A, D_V, 0, S_T0)
A('s_cmp_ge_u32 %s, %d' % (s(S_T0), NV))
A('s_cbranch_scc1 %s' % lnc2)
bcast_atomic(A, D_SLOWV, 1, S_T0)
bcast_atomic(A, D_V, 1, S_H)
A('s_cmp_lt_u32 %s, %d' % (s(S_H), NV))
A('s_cbranch_scc1 %s' % lv)
A.put(lnc2)
A('s_cmp_eq_u32 s76, 1')
A('s_cselect_b32 s76, 2, s76')
bcast_atomic(A, D_Q, 1, S_TASK)
A('s_add_u32 s77, %s, 1' % s(S_TASK))


def qkv2(WN):
    A('s_lshr_b32 s58, %s, 4' % s(S_A))
    A('s_and_b32 s56, %s, 15' % s(S_A))
    A('s_cmp_eq_u32 s58, 1')
    A('s_cselect_b32 s44, %s, %s' % (s(P_WK), s(P_WQ)))
    A('s_cselect_b32 s45, %s, %s' % (s(P_WK + 1), s(P_WQ + 1)))
    A('s_cmp_eq_u32 s58, 2')
    A('s_cselect_b32 s44, %s, s44' % s(P_WV))
    A('s_cselect_b32 s45, %s, s45' % s(P_WV + 1))
    A('s_and_b32 s45, s45, 0xffff')
    A('s_mov_b32 s46, 0x%x' % (640 * 8192))
    A('s_mov_b32 s47, 0x00020000')
    make_srd(A, 48, P_BX, 2048 * 1280)
    make_srd(A, 52, P_WS, WS_SIZE)
    A('s_lshl_b32 s66, s56, 9')
    A('s_mul_i32 s67, %s, 1280' % s(S_B))
    A('s_lshl_b32 s68, s58, 24')
    A('s_lshl_b32 s59, %s, 13' % s(S_B))
    A('s_add_u32 s68, s68, s59')
    A('s_add_u32 s68, s68, s66')
    gemm_tile(A, 4, WN, 640, Operand('IC', 44, 8192, 66), Operand('KC', 48, 1280, 67), store_epilogue_bf16(A, 52, 68, 8192, sc1=True), 0)


bounds = [128, 352, NPREP, 80, 0, 81, 80, 0]
linit = A.label('tinit')
A('s_cmp_lt_u32 %s, %d' % (s(S_TASK), NINIT))
A('s_cbranch_scc1 %s' % linit)
A('s_sub_u32 %s, %s, %d' % (s(S_TASK), s(S_TASK), NINIT))
labs = [A.label('task') for _ in bounds]
for b, l in zip(bounds, labs):
    A('s_cmp_lt_u32 %s, %d' % (s(S_TASK), b))
    A('s_cbranch_scc1 %s' % l)
    A('s_sub_u32 %s, %s, %d' % (s(S_TASK), s(S_TASK), b))
A.put(lattn)
bcast_atomic(A, D_AQ, 1, S_TASK)
A('s_cmp_lt_u32 %s, 512' % s(S_TASK))
A('s_cbranch_scc1 %s' % labs[7])
A('s_branch %s' % done)
lbig = A.label('big')
A.put(linit)
make_srd(A, 44, P_WS, WS_SIZE)
make_srd(A, 48, P_MEM0, 10240)
A('s_lshl_b32 %s, %s, 3' % (s(S_A), s(S_TASK)))
A('s_add_u32 %s, %s, 8' % (s(S_B), s(S_A)))
A('s_min_u32 %s, %s, %d' % (s(S_B), s(S_B), NINIT_V))
lip = A.label('il')
A.put(lip)
ring_init_body(A, S_A)
A('s_add_u32 %s, %s, 1' % (s(S_A), s(S_A)))
A('s_cmp_lt_u32 %s, %s' % (s(S_A), s(S_B)))
A('s_cbranch_scc1 %s' % lip)
A('s_mov_b32 %s, %d' % (s(S_C), D_INIT))
signal(A, P_DBG, S_C)
A('s_branch %s' % lwork)
A.put(labs[0])
A('s_and_b32 %s, %s, 31' % (s(S_A), s(S_TASK)))
A('s_add_u32 %s, %s, 16' % (s(S_A), s(S_A)))
A('s_lshr_b32 %s, %s, 5' % (s(S_C), s(S_TASK)))
A('s_lshl_b32 %s, %s, 6' % (s(S_B), s(S_C)))
A('s_lshl_b32 %s, %s, 2' % (s(S_C), s(S_C)))
A('s_add_u32 %s, %s, %d' % (s(S_C), s(S_C), D_KV))
qkv2(1)
signal(A, P_DBG, S_C)
A('s_branch %s' % lwork)
A.put(labs[1])
A('s_add_u32 %s, %s, 32' % (s(S_TASK), s(S_TASK)))
A('s_mul_i32 %s, %s, 43691' % (s(S_C), s(S_TASK)))
A('s_lshr_b32 %s, %s, 21' % (s(S_C), s(S_C)))
A('s_mul_i32 %s, %s, 48' % (s(S_A), s(S_C)))
A('s_sub_u32 %s, %s, %s' % (s(S_A), s(S_TASK), s(S_A)))
A('s_lshl_b32 %s, %s, 8' % (s(S_B), s(S_C)))
A('s_lshl_b32 %s, %s, 2' % (s(S_C), s(S_C)))
A('s_cmp_lt_u32 %s, 32' % s(S_A))
A('s_cselect_b32 %s, %d, %d' % (s(S_T0), D_KV + 12, D_QD))
A('s_cselect_b32 %s, 16, -32' % s(S_T1))
A('s_add_u32 %s, %s, %s' % (s(S_C), s(S_C), s(S_T0)))
A('s_add_u32 %s, %s, %s' % (s(S_A), s(S_A), s(S_T1)))
A.put(lbig)
qkv2(4)
signal(A, P_DBG, S_C)
A('s_branch %s' % lwork)
A.put(labs[4])
A('s_and_b32 %s, %s, 15' % (s(S_A), s(S_TASK)))
A('s_lshr_b32 %s, %s, 4' % (s(S_C), s(S_TASK)))
A('s_lshl_b32 %s, %s, 8' % (s(S_B), s(S_C)))
A('s_lshl_b32 %s, %s, 2' % (s(S_C), s(S_C)))
A('s_add_u32 %s, %s, %d' % (s(S_C), s(S_C), D_QD))
A('s_branch %s' % lbig)
A.put(labs[2])
make_srd(A, 44, P_WS, WS_SIZE)
make_srd(A, 48, P_WR, 2048 * 642)
make_srd(A, 52, P_WI, 2048 * 642)
A('s_lshl_b32 %s, %s, 3' % (s(S_A), s(S_TASK)))
A('s_add_u32 %s, %s, 8' % (s(S_B), s(S_A)))
A('s_min_u32 %s, %s, %d' % (s(S_B), s(S_B), NPREP_V))
lp = A.label('pl')
A.put(lp)
l1, l2, le = A.label('pp'), A.label('pp'), A.label('pp')
A('s_mov_b32 %s, %s' % (s(S_C), s(S_A)))
A('s_cmp_ge_u32 %s, %d' % (s(S_C), PREP_WG_F))
A('s_cbranch_scc1 %s' % l1)
prep_f2g2(A, S_C)
A('s_branch %s' % le)
A.put(l1)
A('s_sub_u32 %s, %s, %d' % (s(S_C), s(S_C), PREP_WG_F))
A('s_cmp_ge_u32 %s, %d' % (s(S_C), PREP_WG_W))
A('s_cbranch_scc1 %s' % l2)
prep_wt(A, S_C)
A('s_branch %s' % le)
A.put(l2)
A('s_sub_u32 %s, %s, %d' % (s(S_C), s(S_C), PREP_WG_W))
prep_c2(A, S_C)
A.put(le)
A('s_add_u32 %s, %s, 1' % (s(S_A), s(S_A)))
A('s_cmp_lt_u32 %s, %s' % (s(S_A), s(S_B)))
A('s_cbranch_scc1 %s' % lp)
A('s_mov_b32 %s, %d' % (s(S_C), D_PREP))
signal(A, P_DBG, S_C)
A('s_branch %s' % lwork)


def dep(off, thr):
    A('s_mov_b32 %s, %d' % (s(S_A), off))
    A('s_mov_b32 %s, %d' % (s(S_B), thr))
    wait_ge(A, P_DBG, S_A, S_B, 1, sleep=int(os.environ.get('WSLEEP', 24)), wg=True)
A.put(labs[3])
dep(D_PREP, NPREP)
a1_tile(A, S_TASK, 0, sc1=True)
A('s_mov_b32 %s, %d' % (s(S_C), D_A1))
signal(A, P_DBG, S_C)
A('s_branch %s' % lwork)
A.put(labs[5])
dep(D_A1, 80)
a2_task(A, S_TASK, 0, sc1=True)
A('s_mov_b32 %s, %d' % (s(S_C), D_A2))
signal(A, P_DBG, S_C)
A('s_branch %s' % lwork)
A.put(labs[6])
dep(D_A2, 81)
a3_tile(A, S_TASK, 0, sc1=True)
A('s_waitcnt vmcnt(0)')
A('s_branch %s' % lwork)
A.put(labs[7])
A('s_lshr_b32 %s, %s, 3' % (s(S_C), s(S_TASK)))
A('s_lshr_b32 %s, %s, 3' % (s(S_A), s(S_C)))
A('s_lshl_b32 %s, %s, 2' % (s(S_A), s(S_A)))
A('s_add_u32 %s, %s, %d' % (s(S_A), s(S_A), D_QD))
A('s_mov_b32 %s, 16' % s(S_B))
wait_ge(A, P_DBG, S_A, S_B, 1, sleep=int(os.environ.get('WSLEEP', 24)), wg=True)
kv_index(A, S_C, S_A, S_B)
A('s_mov_b32 %s, 32' % s(S_B))
wait_ge(A, P_DBG, S_A, S_B, 1, sleep=int(os.environ.get('WSLEEP', 24)), wg=True)
dep(D_INIT, NINIT)
A('s_lshl_b32 %s, %s, 2' % (s(S_A), s(S_C)))
A('s_add_u32 %s, %s, 0x%x' % (s(S_A), s(S_A), R_KVM))
A('s_mov_b32 %s, 31' % s(S_B))
wait_ge(A, P_WS, S_A, S_B, 1, signed=True, sleep=int(os.environ.get('WSLEEP', 12)), wg=True)
attn_task(A, S_TASK, 0, sc1=True)
A('s_lshl_b32 %s, %s, 2' % (s(S_C), s(S_C)))
A('s_add_u32 %s, %s, 0x%x' % (s(S_C), s(S_C), R_CNT))
signal(A, P_WS, S_C)
A('s_branch %s' % lattn)

A.put(los)
A('s_mov_b32 s72, %s' % s(S_H))
dep(D_INIT, NINIT)
def os_wait(A, seg):
    A('s_lshl_b32 s73, %s, 2' % s(seg))
    A('s_add_u32 s73, s73, 0x%x' % R_CNT)
    A('s_mov_b32 s74, 7')
    global S_SPIN
    lp, ok = A.label('wl'), A.label('wo')
    A('s_waitcnt vmcnt(0)')
    A('s_cmp_lg_u32 s56, 0')
    A('s_cbranch_scc1 %s' % ok)
    A('v_mov_b32 v28, s73')
    A('s_mov_b32 s75, 0')
    A.put(lp)
    A('global_load_dword v29, v28, %s sc1' % s(P_WS, 2))
    A('s_waitcnt vmcnt(0)')
    A('v_readfirstlane_b32 s76, v29')
    A('s_cmp_ge_i32 s76, s74')
    A('s_cbranch_scc1 %s' % ok)
    A('s_sleep 12')
    A('s_add_u32 s75, s75, 1')
    A('s_cmp_lt_u32 s75, %d' % SPIN_MAX)
    A('s_cbranch_scc1 %s' % lp)
    A('s_branch %s' % abort)
    A.put(ok)
    A('s_barrier')
ostream(A, 72, wait_fn=os_wait, sc1=True, ngrp=NGRP)
A('s_branch %s' % done)

A.put(lh)
A('s_mov_b32 %s, -1' % s(S_KVOK))
stamps = bool(os.environ.get('STAMPSET'))
for i in range(8):
    A('s_mov_b32 %s, 0' % s(S_ST + i))
hdone = A.label('hdone')
h_cu(A, abort, hdone, kv_sc1=True, stamps=stamps, kv_wait=chain_kv_wait, prog_add=chain_prog_add, mode_wait=lambda: (h_mode_wait(A, abort), chain_init_wait()))
A.put(hdone)
if stamps:
    A('s_lshl_b32 %s, %s, 2' % (s(S_T0), s(S_H)))
    A('s_add_u32 %s, %s, %s' % (s(S_T0), s(S_T0), s(S_WV)))
    A('s_lshl_b32 %s, %s, 5' % (s(S_T0), s(S_T0)))
    A('s_add_u32 %s, %s, 0x%x' % (s(S_T0), s(S_T0), 200 * MB))
    for i in range(8):
        A('v_mov_b32 %s, %s' % (v(40 + i), s(S_ST + i)))
    A('v_mov_b32 v2, 0')
    A('buffer_store_dwordx4 v[40:43], v2, %s, %s offen' % (s(S_WS, 4), s(S_T0)))
    A('buffer_store_dwordx4 v[44:47], v2, %s, %s offen offset:16' % (s(S_WS, 4), s(S_T0)))
A('s_branch %s' % done)
A.put(lv)
def v_prog(A):
    l = A.label('pa')
    A('s_cmp_lg_u32 %s, 3' % s(S_WV))
    A('s_cbranch_scc1 %s' % l)
    A('s_mov_b64 exec, 1')
    A('s_lshl_b32 %s, %s, 2' % (s(S_T0), s(S_STEP)))
    A('s_add_u32 %s, %s, 0x%x' % (s(S_T0), s(S_T0), R_KVM - (0 if os.environ.get('CHAIN', 'k_chain11') in ('k_chain7', 'k_chain11') else 4)))
    A('v_mov_b32 v22, %s' % s(S_T0))
    A('v_mov_b32 v23, 1')
    A('global_atomic_add v22, v23, %s' % s(P_WS, 2))
    A('s_mov_b64 exec, -1')
    A.put(l)
if os.environ.get('CHAIN', 'k_chain11') == 'k_chain10':
    v_cu(A, abort, done, prog_add=v_prog, init_wait=chain_init_wait, mode_wait=lambda: h_mode_wait(A, abort, D_V, D_SLOWV))
else:
    v_cu(A, abort, done, prog_add=v_prog, init_wait=chain_init_wait)
A.put(abort)
A('s_mov_b64 exec, -1')
A('v_mov_b32 v1, 252')
A('v_mov_b32 v2, 1')
A('global_atomic_add v1, v2, %s' % s(P_DBG, 2))
A.put(done)
A('s_endpgm')
descs.append(kernel_desc('main_kernel'))
launches.append('; @launch kernel=main_kernel grid=(256,1,1) block=(256,1,1) lds=%d' % max(L_END, OS_LDS, 131072))

A.lines = [l.replace('{SC}', ' sc1').replace(' lds sc1', ' sc1 lds') for l in A.lines]
txt = hdr() + '\n'.join(launches) + '\n.amdgcn_target "amdgcn-amd-amdhsa--gfx950"\n' + A.text() + ''.join(descs)
open(sys.argv[1] if len(sys.argv) > 1 else 'out.s', 'w').write(txt)
```

```python
import struct
from asmlib import Asm, v, a, s
from common import *
from gemm import Operand, gemm_tile, store_epilogue_bf16

C1 = 0.08838834764831845 * 1.4426950408889634
def f32(x):
    return '0x%08x' % struct.unpack('<I', struct.pack('<f', x))[0]


def attn_task(A, s_task, vtid, sc1=False, lds_base=0, mid_wait=None):
    SC = ' sc1' if sc1 else ''
    A('v_and_b32 v1, 63, %s' % v(vtid))
    A('v_lshrrev_b32 v2, 6, %s' % v(vtid))
    A('v_readfirstlane_b32 s56, v2')
    A('s_lshr_b32 s57, %s, 3' % s(s_task))
    A('s_and_b32 s58, %s, 7' % s(s_task))
    A('s_lshl_b32 s58, s58, 2')
    A('s_add_u32 s58, s58, s56')
    make_srd(A, 52, P_WS, WS_SIZE)
    A('s_lshl_b32 s59, s57, 18')
    A('s_lshl_b32 s60, s58, 8')
    A('s_add_u32 s59, s59, s60')
    A('v_and_b32 v3, 31, v1')
    A('v_lshrrev_b32 v4, 5, v1')
    A('v_lshlrev_b32 v5, 13, v3')
    A('v_lshl_add_u32 v5, v4, 4, v5')
    QF, KF, MF = 16, 48, 80
    A('s_add_u32 s61, s59, 0x%x' % WS_Q)
    for j in range(8):
        A('buffer_load_dwordx4 %s, v5, s[52:55], s61 offen offset:%d%s' % (v(QF + 4 * j, 4), 32 * j, SC))
    A('s_add_u32 s61, s59, 0x%x' % WS_K)
    for j in range(8):
        A('buffer_load_dwordx4 %s, v5, s[52:55], s61 offen offset:%d%s' % (v(KF + 4 * j, 4), 32 * j, SC))
    A('s_lshl_b32 s63, s56, 13')
    if lds_base:
        A('s_add_u32 s63, s63, %d' % lds_base)
    A('v_lshrrev_b32 v8, 4, v1')
    A('v_and_b32 v9, 15, v1')
    A('v_lshlrev_b32 v10, 2, v8')
    A('v_xor_b32 v9, v9, v10')
    A('v_lshlrev_b32 v9, 4, v9')
    A('v_lshl_add_u32 v9, v8, 13, v9')
    A('s_add_u32 s61, s59, 0x%x' % WS_V)
    for i in range(8):
        A('s_add_u32 m0, s63, %d' % (i * 1024))
        A('s_add_u32 s62, s61, %d' % (i * 4 * 8192))
        A('buffer_load_dwordx4 v9, s[52:55], s62 offen lds%s' % SC)
    A('v_bfe_u32 v8, v1, 2, 2')
    A('v_lshl_add_u32 v10, v4, 2, v8')
    A('v_lshlrev_b32 v10, 8, v10')
    A('v_lshl_add_u32 v10, v8, 6, v10')
    A('v_bfe_u32 v11, v1, 4, 1')
    A('v_lshl_add_u32 v10, v11, 5, v10')
    A('v_and_b32 v11, 3, v1')
    A('v_lshl_add_u32 v10, v11, 3, v10')
    A('v_add_u32 v10, s63, v10')
    SX, SM = 128, 144
    A('s_waitcnt vmcnt(8)')
    for j in range(8):
        A('v_mfma_f32_32x32x16_bf16 %s, %s, %s, %s' % (v(SX, 16), v(KF + 4 * j, 4), v(QF + 4 * j, 4), '0' if j == 0 else v(SX, 16)))
    if mid_wait:
        mid_wait()
    A('v_and_b32 v6, 7, v1')
    A('v_lshlrev_b32 v6, 8, v6')
    A('v_lshl_add_u32 v6, v4, 4, v6')
    A('s_lshl_b32 s61, s57, 16')
    A('s_lshl_b32 s62, s58, 11')
    A('s_add_u32 s61, s61, s62')
    A('s_add_u32 s62, s61, 0x%x' % WS_KM)
    for j in range(8):
        A('buffer_load_dwordx4 %s, v6, s[52:55], s62 offen offset:%d%s' % (v(MF + 4 * j, 4), 32 * j, SC))
    VM = 112
    A('v_bfe_u32 v7, v1, 4, 1')
    A('v_lshlrev_b32 v7, 5, v7')
    A('v_lshl_add_u32 v7, v4, 4, v7')
    A('v_and_b32 v13, 15, v1')
    A('v_add_u32 v7, v7, v13')
    A('v_lshlrev_b32 v7, 3, v7')
    A('s_add_u32 s62, s61, 0x%x' % WS_VM)
    for et in range(4):
        A('buffer_load_dwordx2 %s, v7, s[52:55], s62 offen offset:%d%s' % (v(VM + 2 * et, 2), 512 * et, SC))
    A('s_waitcnt vmcnt(4)')
    for j in range(8):
        A('v_mfma_f32_32x32x16_bf16 %s, %s, %s, %s' % (v(SM, 16), v(MF + 4 * j, 4), v(QF + 4 * j, 4), '0' if j == 0 else v(SM, 16)))
    A('s_waitcnt vmcnt(0)')
    VF = 16
    VF = 160
    for et in range(4):
        A('v_xor_b32 v11, %d, v10' % (et << 6))
        for ks in range(2):
            r = VF + 4 * (et * 2 + ks)
            A('ds_read_b64_tr_b16 %s, v11 offset:%d' % (v(r, 2), ks * 4096))
            A('ds_read_b64_tr_b16 %s, v11 offset:%d' % (v(r + 2, 2), ks * 4096 + 2048))
    A('v_lshlrev_b32 v12, 2, v4')
    A('v_sub_u32 v12, v3, v12')
    A('v_mov_b32 v13, 0xff7fffff')
    for r in range(16):
        A('v_cmp_le_i32 vcc, %d, v12' % (8 * (r >> 2) + (r & 3)))
        A('v_cndmask_b32 %s, v13, %s, vcc' % (v(SX + r), v(SX + r)))
    A('v_max3_f32 v14, %s, %s, %s' % (v(SM), v(SM + 1), v(SM + 2)))
    A('v_max_f32 v14, v14, %s' % v(SM + 3))
    for r in range(0, 16, 2):
        A('v_max3_f32 v14, v14, %s, %s' % (v(SX + r), v(SX + r + 1)))
    A('v_mov_b32 v15, v14')
    A('v_permlane32_swap_b32 v14, v15')
    A('v_max_f32 v14, v14, v15')
    A('s_mov_b32 s62, %s' % f32(C1))
    A('v_mul_f32 v14, s62, v14')
    regs = [SX + r for r in range(16)] + [SM + r for r in range(4)]
    for r in regs:
        A('v_fma_f32 %s, %s, s62, -v14' % (v(r), v(r)))
    for r in regs:
        A('v_exp_f32 %s, %s' % (v(r), v(r)))
    A('v_add_f32 v14, %s, %s' % (v(regs[0]), v(regs[1])))
    for r in regs[2:]:
        A('v_add_f32 v14, v14, %s' % v(r))
    A('v_mov_b32 v15, v14')
    A('v_permlane32_swap_b32 v14, v15')
    A('v_add_f32 v14, v14, v15')
    A('v_rcp_f32 v14, v14')
    PF = 16
    for i in range(8):
        A('v_cvt_pk_bf16_f32 %s, %s, %s' % (v(PF + i), v(SX + 2 * i), v(SX + 2 * i + 1)))
    A('v_cvt_pk_bf16_f32 %s, %s, %s' % (v(PF + 8), v(SM), v(SM + 1)))
    A('v_cvt_pk_bf16_f32 %s, %s, %s' % (v(PF + 9), v(SM + 2), v(SM + 3)))
    OA = 32
    A('s_waitcnt lgkmcnt(0)')
    for et in range(4):
        o = v(OA + 16 * et, 16)
        A('v_mfma_f32_32x32x16_bf16 %s, %s, %s, 0' % (o, v(VF + 8 * et, 4), v(PF, 4)))
        A('v_mfma_f32_32x32x16_bf16 %s, %s, %s, %s' % (o, v(VF + 8 * et + 4, 4), v(PF + 4, 4), o))
        A('v_mfma_f32_32x32x8_bf16 %s, %s, %s, %s' % (o, v(VM + 2 * et, 2), v(PF + 8, 2), o))
    A('s_add_u32 s61, s59, 0x%x' % WS_O)
    for et in range(4):
        b = OA + 16 * et
        p = 96 + 8 * (et & 1)
        for i in range(16):
            A('v_mul_f32 %s, %s, v14' % (v(b + i), v(b + i)))
        for i in range(8):
            A('v_cvt_pk_bf16_f32 %s, %s, %s' % (v(p + i), v(b + 2 * i), v(b + 2 * i + 1)))
        A('v_permlane32_swap_b32 %s, %s' % (v(p), v(p + 2)))
        A('v_permlane32_swap_b32 %s, %s' % (v(p + 1), v(p + 3)))
        A('v_permlane32_swap_b32 %s, %s' % (v(p + 4), v(p + 6)))
        A('v_permlane32_swap_b32 %s, %s' % (v(p + 5), v(p + 7)))
        A('buffer_store_dwordx4 %s, v5, s[52:55], s61 offen offset:%d%s' % (v(p, 4), et * 64, SC))
        A('buffer_store_dwordx4 %s, v5, s[52:55], s61 offen offset:%d%s' % (v(p + 4, 4), et * 64 + 32, SC))


def oproj_tile(A, s_tile, vtid, sc1=False):
    A('s_mul_i32 s57, %s, 52429' % s(s_tile))
    A('s_lshr_b32 s57, s57, 18')
    A('s_mul_i32 s56, s57, 5')
    A('s_sub_u32 s56, %s, s56' % s(s_tile))
    make_srd(A, 44, P_WO, 4096 * 1280)
    make_srd(A, 48, P_OUT, 2048 * 2560)
    make_srd(A, 52, P_WS, WS_SIZE)
    A('s_lshl_b32 s66, s56, 8')
    A('s_lshl_b32 s67, s57, 19')
    A('s_add_u32 s67, s67, 0x%x' % WS_O)
    A('s_mul_i32 s68, s57, %d' % (64 * 2560))
    A('s_add_u32 s68, s68, s66')
    A('s_add_u32 s68, s68, 1280')
    opM = Operand('IC', 44, 1280, 66)
    opN = Operand('KC', 52, 8192, 67)
    gemm_tile(A, 2, 1, 4096, opM, opN, store_epilogue_bf16(A, 48, 68, 2560), vtid, ldsc1=sc1)
```

```python
import sys, os
from asmlib import Asm, v, a, s
from common import *
import gemm
gemm.STAMP = False
from gemm import Operand, gemm_tile, store_epilogue_bf16
import importlib
KC = importlib.import_module(os.environ.get('CHAIN', 'k_chain11'))
globals().update({k: getattr(KC, k) for k in dir(KC) if not k.startswith('__')})
from k_parta import *
from k_attn import *
from k_ostream import *

launches = []
descs = []
A = Asm()

def hdr():
    h = open('cdna_kernels/%s.s.ref' % NAME).read().split('\n')
    out = []
    for l in h:
        if l.startswith('; Override launch'):
            break
        out.append(l)
    return '\n'.join(out) + '\n'

D_H, D_V, D_SLOW, D_Q, D_PROG, D_PREP, D_A1, D_A2 = [4 * i for i in range(8)]
D_KV = 32
D_QD = 80
D_O = 112
D_AQ = 120
D_SLOWV = 124
D_HL = 128
NAT = int(os.environ.get('NAT', 32))
R_CNT = WS_RING + 49152
NPREP_V = PREP_WG_F + PREP_WG_W + PREP_WG_C
NPREP = (NPREP_V + 7) // 8
NGRP = int(os.environ.get('NGRP', 3))
NV, NO = 32, 20 * NGRP

NINIT_V = RING_BYTES // 4096
NINIT = (NINIT_V + 7) // 8
D_INIT = 116
R_KVM = R_CNT + 256

kernel_begin(A, 'main_kernel')
abort, done = A.label('abort'), A.label('done')
S_TASK, S_A, S_B, S_C = 72, 73, 74, 75
S_KVOK = 99


def wait_ge(A, base_pair, off_sgpr, thr_sgpr, vt, signed=False, sleep=4, wg=False, maxspin=None):
    lp, ok = A.label('wl'), A.label('wo')
    if wg:
        A('v_readfirstlane_b32 %s, v0' % s(S_T3))
        A('s_cmp_ge_u32 %s, 64' % s(S_T3))
        A('s_cbranch_scc1 %s' % ok)
    A('v_mov_b32 %s, %s' % (v(vt), s(off_sgpr)))
    A('s_mov_b32 %s, 0' % s(S_SPIN))
    A.put(lp)
    A('global_load_dword %s, %s, %s sc1' % (v(vt + 1), v(vt), s(base_pair, 2)))
    A('s_waitcnt vmcnt(0)')
    A('v_readfirstlane_b32 %s, %s' % (s(S_T3), v(vt + 1)))
    A('s_cmp_ge_%s %s, %s' % ('i32' if signed else 'u32', s(S_T3), s(thr_sgpr)))
    A('s_cbranch_scc1 %s' % ok)
    A('s_sleep %d' % sleep)
    A('s_add_u32 %s, %s, 1' % (s(S_SPIN), s(S_SPIN)))
    A('s_cmp_lt_u32 %s, %d' % (s(S_SPIN), maxspin or SPIN_MAX))
    A('s_cbranch_scc1 %s' % lp)
    if not maxspin:
        A('s_branch %s' % abort)
    A.put(ok)
    if wg:
        A('s_barrier')


def signal(A, base_pair, off_sgpr):
    A('s_waitcnt vmcnt(0)')
    A('s_barrier')
    A('v_mov_b32 v1, %s' % s(off_sgpr))
    A('v_mov_b32 v2, 1')
    A('v_cmp_eq_u32 vcc, 0, v0')
    A('s_and_saveexec_b64 s[6:7], vcc')
    l = A.label('sg')
    A('s_cbranch_execz %s' % l)
    A('global_atomic_add v1, v2, %s' % s(base_pair, 2))
    A.put(l)
    A('s_mov_b64 exec, s[6:7]')


def kv_index(A, seg, dst, last):
    A('s_lshr_b32 %s, %s, 3' % (s(dst), s(seg)))
    A('s_lshl_b32 %s, %s, 2' % (s(dst), s(dst)))
    A('s_add_u32 %s, %s, %d' % (s(dst), s(dst), D_KV))


def chain_kv_wait(A, seg):
    ok, lp = A.label('kvok'), A.label('kvl')
    A('s_cmp_lt_i32 %s, %s' % (s(S_KVOK), s(seg)))
    A('s_cbranch_scc0 %s' % ok)
    A('v_mbcnt_lo_u32_b32 v36, -1, 0')
    A('v_min_u32 v36, 7, v36')
    A('v_lshlrev_b32 v36, 2, v36')
    A('s_mov_b32 %s, 0' % s(S_SPIN))
    A.put(lp)
    A('global_load_dword v37, v36, %s offset:%d sc1' % (s(P_DBG, 2), D_KV))
    A('s_waitcnt vmcnt(0)')
    A('v_cmp_eq_u32 vcc, 0, v36')
    A('v_lshrrev_b32 v38, 1, v37')
    A('v_cndmask_b32 v37, v37, v38, vcc')
    A('v_cmp_le_u32 vcc, 32, v37')
    A('s_and_b32 %s, vcc_lo, 0xff' % s(S_T1))
    A('s_ff0_i32_b32 %s, %s' % (s(S_T1), s(S_T1)))
    A('s_lshl_b32 %s, %s, 3' % (s(S_KVOK), s(S_T1)))
    A('s_sub_u32 %s, %s, 1' % (s(S_KVOK), s(S_KVOK)))
    A('s_cmp_lt_i32 %s, %s' % (s(S_KVOK), s(seg)))
    A('s_cbranch_scc0 %s' % ok)
    A('s_sleep 4')
    A('s_add_u32 %s, %s, 1' % (s(S_SPIN), s(S_SPIN)))
    A('s_cmp_lt_u32 %s, %d' % (s(S_SPIN), SPIN_MAX))
    A('s_cbranch_scc1 %s' % lp)
    A('s_branch %s' % abort)
    A.put(ok)


def chain_init_wait():
    if os.environ.get('GATE'):
        bcast_atomic(A, D_HL, 1, S_T1)
        A('v_and_b32 v1, 63, v0')
    A('s_mov_b32 %s, %d' % (s(S_T1), D_INIT))
    A('s_mov_b32 %s, %d' % (s(S_T2), NINIT))
    wait_ge(A, P_DBG, S_T1, S_T2, 2, sleep=2)


def chain_start_wait(is_h):
    lp, ok = A.label('sw'), A.label('swo')
    A('v_mbcnt_lo_u32_b32 v2, -1, 0')
    A('v_min_u32 v2, 31, v2')
    A('v_lshlrev_b32 v2, 2, v2')
    A('s_mov_b32 %s, 0' % s(S_SPIN))
    A.put(lp)
    A('global_load_dword v3, v2, %s sc1' % s(P_DBG, 2))
    A('s_waitcnt vmcnt(0)')
    A('v_readlane_b32 %s, v3, %d' % (s(S_T0), D_INIT // 4))
    A('v_readlane_b32 %s, v3, 0' % s(S_T1))
    A('v_readlane_b32 %s, v3, %d' % (s(S_T2), D_KV // 4))
    A('v_readlane_b32 %s, v3, %d' % (s(S_T3), D_SLOW // 4))
    A('s_cmp_ge_u32 %s, %d' % (s(S_T0), NINIT))
    A('s_cselect_b32 %s, 1, 0' % s(S_T0))
    if is_h:
        A('s_cmp_ge_u32 %s, 32' % s(S_T1))
        A('s_cselect_b32 %s, %s, 0' % (s(S_T0), s(S_T0)))
        A('s_cmp_ge_u32 %s, 64' % s(S_T2))
        A('s_cselect_b32 %s, %s, 0' % (s(S_T0), s(S_T0)))
    A('s_cmp_eq_u32 %s, 1' % s(S_T0))
    A('s_cbranch_scc1 %s' % ok)
    A('s_sleep 4')
    A('s_add_u32 %s, %s, 1' % (s(S_SPIN), s(S_SPIN)))
    A('s_cmp_lt_u32 %s, %d' % (s(S_SPIN), SPIN_MAX))
    A('s_cbranch_scc1 %s' % lp)
    A('s_branch %s' % abort)
    A.put(ok)
    if is_h:
        A('s_cmp_eq_u32 %s, 0' % s(S_T3))
        A('s_cselect_b32 %s, 1, 0' % s(S_FAST))
        A('s_mov_b32 %s, 7' % s(S_KVOK))


def chain_prog_add(A):
    l = A.label('pa')
    A('s_cmp_lg_u32 %s, 3' % s(S_WV))
    A('s_cbranch_scc1 %s' % l)
    A('s_mov_b64 exec, 1')
    A('v_mov_b32 v36, %d' % D_PROG)
    A('v_mov_b32 v37, 1')
    A('global_atomic_add v36, v37, %s' % s(P_DBG, 2))
    A('s_mov_b64 exec, -1')
    A.put(l)


lattn = A.label('attnq')
lh, lv, lo, los, lwork = A.label('hrole'), A.label('vrole'), A.label('other'), A.label('orole'), A.label('work')
A('s_cmp_ge_u32 s2, 256')
A('s_cbranch_scc1 %s' % done)
load_ptrs(A)
A('s_getreg_b32 s3, hwreg(HW_REG_XCC_ID)')
A('s_and_b32 s3, s3, 7')
A('s_cmp_lg_u32 s3, %d' % int(os.environ.get('HXCD', 0)))
A('s_cbranch_scc1 %s' % lo)
bcast_atomic(A, D_H, 1, S_H)
A('s_cmp_lt_u32 %s, 32' % s(S_H))
A('s_cbranch_scc1 %s' % lh)
A.put(lo)
lo2 = A.label('other2')
A('s_cmp_lg_u32 s3, %d' % int(os.environ.get('VXCD', 1)))
A('s_cbranch_scc1 %s' % lo2)
bcast_atomic(A, D_V, 1, S_H)
A('s_cmp_lt_u32 %s, %d' % (s(S_H), NV))
A('s_cbranch_scc1 %s' % lv)
A.put(lo2)
bcast_atomic(A, D_O, 1, S_H)
A('s_mov_b32 s82, %s' % s(S_H))
A('s_mov_b32 s76, 0')
A('s_mov_b32 s77, 0')
A.put(lwork)
lchk = A.label('chk')
A('s_cmp_lg_u32 s76, 0')
A('s_cbranch_scc1 %s' % lchk)
A('s_cmp_gt_u32 s77, %d' % NINIT)
A('s_cselect_b32 s76, 1, 0')
A.put(lchk)
lnc = A.label('nc')
lnc2 = A.label('nc2')
A('s_cmp_lt_u32 s82, %d' % (NO + NAT))
A('s_cbranch_scc1 %s' % lnc2)
A('s_cmp_lg_u32 s76, 1')
A('s_cbranch_scc1 %s' % lnc)
bcast_atomic(A, D_H, 0, S_T0)
A('s_cmp_ge_u32 %s, 32' % s(S_T0))
A('s_cbranch_scc1 %s' % lnc)
bcast_atomic(A, D_SLOW, 1, S_T0)
bcast_atomic(A, D_H, 1, S_H)
A('s_cmp_lt_u32 %s, 32' % s(S_H))
A('s_cbranch_scc1 %s' % lh)
A.put(lnc)
A('s_cmp_lg_u32 s76, 1')
A('s_cbranch_scc1 %s' % lnc2)
bcast_atomic(A, D_V, 0, S_T0)
A('s_cmp_ge_u32 %s, %d' % (s(S_T0), NV))
A('s_cbranch_scc1 %s' % lnc2)
bcast_atomic(A, D_SLOWV, 1, S_T0)
bcast_atomic(A, D_V, 1, S_H)
A('s_cmp_lt_u32 %s, %d' % (s(S_H), NV))
A('s_cbranch_scc1 %s' % lv)
A.put(lnc2)
A('s_cmp_eq_u32 s76, 1')
A('s_cselect_b32 s76, 2, s76')
lgen = A.label('gen')
A('s_cmp_lg_u32 s76, 2')
A('s_cbranch_scc1 %s' % lgen)
A('s_mov_b32 %s, s82' % s(S_H))
A('s_cmp_lt_u32 s82, %d' % NO)
A('s_cbranch_scc1 %s' % los)
A('s_cmp_lt_u32 s82, %d' % (NO + NAT))
A('s_cbranch_scc1 %s' % lattn)
A.put(lgen)
bcast_atomic(A, D_Q, 1, S_TASK)
A('s_add_u32 s77, %s, 1' % s(S_TASK))


def qkv2(WN):
    A('s_lshr_b32 s58, %s, 4' % s(S_A))
    A('s_and_b32 s56, %s, 15' % s(S_A))
    A('s_cmp_eq_u32 s58, 1')
    A('s_cselect_b32 s44, %s, %s' % (s(P_WK), s(P_WQ)))
    A('s_cselect_b32 s45, %s, %s' % (s(P_WK + 1), s(P_WQ + 1)))
    A('s_cmp_eq_u32 s58, 2')
    A('s_cselect_b32 s44, %s, s44' % s(P_WV))
    A('s_cselect_b32 s45, %s, s45' % s(P_WV + 1))
    A('s_and_b32 s45, s45, 0xffff')
    A('s_mov_b32 s46, 0x%x' % (640 * 8192))
    A('s_mov_b32 s47, 0x00020000')
    make_srd(A, 48, P_BX, 2048 * 1280)
    make_srd(A, 52, P_WS, WS_SIZE)
    A('s_lshl_b32 s66, s56, 9')
    A('s_mul_i32 s67, %s, 1280' % s(S_B))
    A('s_lshl_b32 s68, s58, 24')
    A('s_lshl_b32 s59, %s, 13' % s(S_B))
    A('s_add_u32 s68, s68, s59')
    A('s_add_u32 s68, s68, s66')
    gemm_tile(A, 4, WN, 640, Operand('IC', 44, 8192, 66), Operand('KC', 48, 1280, 67), store_epilogue_bf16(A, 52, 68, 8192, sc1=True), 0)


bounds = [64, 320, NPREP, 80, 0, 81, 80, 0]
lb1 = A.label('b1')
linit = A.label('tinit')
A('s_cmp_lt_u32 %s, %d' % (s(S_TASK), NINIT))
A('s_cbranch_scc1 %s' % linit)
A('s_sub_u32 %s, %s, %d' % (s(S_TASK), s(S_TASK), NINIT))
A('s_cmp_lt_u32 %s, 32' % s(S_TASK))
A('s_cbranch_scc1 %s' % lb1)
A('s_sub_u32 %s, %s, 32' % (s(S_TASK), s(S_TASK)))
labs = [A.label('task') for _ in bounds]
for b, l in zip(bounds, labs):
    A('s_cmp_lt_u32 %s, %d' % (s(S_TASK), b))
    A('s_cbranch_scc1 %s' % l)
    A('s_sub_u32 %s, %s, %d' % (s(S_TASK), s(S_TASK), b))
A('s_mov_b32 %s, s82' % s(S_H))
A('s_cmp_lt_u32 s82, %d' % NO)
A('s_cbranch_scc1 %s' % los)
A.put(lattn)
bcast_atomic(A, D_AQ, 1, S_TASK)
A('s_cmp_lt_u32 %s, 512' % s(S_TASK))
A('s_cbranch_scc1 %s' % labs[7])
A('s_branch %s' % done)
lbig = A.label('big')
A.put(linit)
make_srd(A, 44, P_WS, WS_SIZE)
make_srd(A, 48, P_MEM0, 10240)
A('s_lshl_b32 %s, %s, 3' % (s(S_A), s(S_TASK)))
A('s_add_u32 %s, %s, 8' % (s(S_B), s(S_A)))
A('s_min_u32 %s, %s, %d' % (s(S_B), s(S_B), NINIT_V))
lip = A.label('il')
A.put(lip)
ring_init_body(A, S_A)
A('s_add_u32 %s, %s, 1' % (s(S_A), s(S_A)))
A('s_cmp_lt_u32 %s, %s' % (s(S_A), s(S_B)))
A('s_cbranch_scc1 %s' % lip)
A('s_mov_b32 %s, %d' % (s(S_C), D_INIT))
signal(A, P_DBG, S_C)
A('s_branch %s' % lwork)
A.put(labs[0])
A('s_and_b32 %s, %s, 31' % (s(S_A), s(S_TASK)))
A('s_add_u32 %s, %s, 16' % (s(S_A), s(S_A)))
A('s_lshr_b32 %s, %s, 5' % (s(S_C), s(S_TASK)))
A('s_lshl_b32 %s, %s, 7' % (s(S_B), s(S_C)))
A('s_mov_b32 %s, %d' % (s(S_C), D_KV))
qkv2(2)
signal(A, P_DBG, S_C)
A('s_branch %s' % lwork)
A.put(labs[1])
if os.environ.get('GATE'):
    lg_ = A.label('gate')
    A('s_cmp_ge_u32 %s, 160' % s(S_TASK))
    A('s_cbranch_scc1 %s' % lg_)
    A('s_mov_b32 %s, %d' % (s(S_A), D_HL))
    A('s_mov_b32 %s, %d' % (s(S_B), int(os.environ['GATE'])))
    wait_ge(A, P_DBG, S_A, S_B, 1, sleep=16, wg=True, maxspin=40)
    A.put(lg_)
A('s_add_u32 %s, %s, 32' % (s(S_TASK), s(S_TASK)))
A.put(lb1)
order = [(1, 1), (2, 1), (1, 2), (2, 2), (0, 0), (0, 1), (1, 3), (2, 3), (0, 2), (1, 4), (2, 4), (0, 3), (1, 5), (2, 5), (0, 4), (1, 6), (2, 6), (0, 5), (1, 7), (2, 7), (0, 6), (0, 7), (0, 0), (0, 0)]
words = [sum(((k * 8 + rb) << (5 * i)) for i, (k, rb) in enumerate(order[6 * w:6 * w + 6])) for w in range(4)]
A('s_lshr_b32 %s, %s, 4' % (s(S_C), s(S_TASK)))
A('s_mul_i32 %s, %s, 43' % (s(S_A), s(S_C)))
A('s_lshr_b32 %s, %s, 8' % (s(S_A), s(S_A)))
A('s_mul_i32 %s, %s, 6' % (s(S_B), s(S_A)))
A('s_sub_u32 %s, %s, %s' % (s(S_C), s(S_C), s(S_B)))
A('s_mul_i32 %s, %s, 5' % (s(S_C), s(S_C)))
A('s_mov_b32 %s, 0x%x' % (s(S_B), words[0]))
for w in range(1, 4):
    A('s_cmp_eq_u32 %s, %d' % (s(S_A), w))
    A('s_cselect_b32 %s, 0x%x, %s' % (s(S_B), words[w], s(S_B)))
A('s_lshr_b32 %s, %s, %s' % (s(S_B), s(S_B), s(S_C)))
A('s_bfe_u32 %s, %s, 0x20003' % (s(S_T0), s(S_B)))
A('s_and_b32 %s, %s, 7' % (s(S_C), s(S_B)))
A('s_and_b32 %s, %s, 15' % (s(S_A), s(S_TASK)))
A('s_lshl_b32 %s, %s, 4' % (s(S_T1), s(S_T0)))
A('s_add_u32 %s, %s, %s' % (s(S_A), s(S_A), s(S_T1)))
A('s_lshl_b32 %s, %s, 8' % (s(S_B), s(S_C)))
A('s_lshl_b32 %s, %s, 2' % (s(S_C), s(S_C)))
A('s_cmp_eq_u32 %s, 0' % s(S_T0))
A('s_cselect_b32 %s, %d, %d' % (s(S_T0), D_QD, D_KV))
A('s_add_u32 %s, %s, %s' % (s(S_C), s(S_C), s(S_T0)))
A.put(lbig)
qkv2(4)
signal(A, P_DBG, S_C)
A('s_branch %s' % lwork)
A.put(labs[4])
A('s_and_b32 %s, %s, 15' % (s(S_A), s(S_TASK)))
A('s_lshr_b32 %s, %s, 4' % (s(S_C), s(S_TASK)))
A('s_lshl_b32 %s, %s, 8' % (s(S_B), s(S_C)))
A('s_lshl_b32 %s, %s, 2' % (s(S_C), s(S_C)))
A('s_add_u32 %s, %s, %d' % (s(S_C), s(S_C), D_QD))
A('s_branch %s' % lbig)
A.put(labs[2])
make_srd(A, 44, P_WS, WS_SIZE)
make_srd(A, 48, P_WR, 2048 * 642)
make_srd(A, 52, P_WI, 2048 * 642)
A('s_lshl_b32 %s, %s, 3' % (s(S_A), s(S_TASK)))
A('s_add_u32 %s, %s, 8' % (s(S_B), s(S_A)))
A('s_min_u32 %s, %s, %d' % (s(S_B), s(S_B), NPREP_V))
lp = A.label('pl')
A.put(lp)
l1, l2, le = A.label('pp'), A.label('pp'), A.label('pp')
A('s_mov_b32 %s, %s' % (s(S_C), s(S_A)))
A('s_cmp_ge_u32 %s, %d' % (s(S_C), PREP_WG_F))
A('s_cbranch_scc1 %s' % l1)
prep_f2g2(A, S_C)
A('s_branch %s' % le)
A.put(l1)
A('s_sub_u32 %s, %s, %d' % (s(S_C), s(S_C), PREP_WG_F))
A('s_cmp_ge_u32 %s, %d' % (s(S_C), PREP_WG_W))
A('s_cbranch_scc1 %s' % l2)
prep_wt(A, S_C)
A('s_branch %s' % le)
A.put(l2)
A('s_sub_u32 %s, %s, %d' % (s(S_C), s(S_C), PREP_WG_W))
prep_c2(A, S_C)
A.put(le)
A('s_add_u32 %s, %s, 1' % (s(S_A), s(S_A)))
A('s_cmp_lt_u32 %s, %s' % (s(S_A), s(S_B)))
A('s_cbranch_scc1 %s' % lp)
A('s_mov_b32 %s, %d' % (s(S_C), D_PREP))
signal(A, P_DBG, S_C)
A('s_branch %s' % lwork)


def dep(off, thr):
    A('s_mov_b32 %s, %d' % (s(S_A), off))
    A('s_mov_b32 %s, %d' % (s(S_B), thr))
    wait_ge(A, P_DBG, S_A, S_B, 1, sleep=int(os.environ.get('WSLEEP', 24)), wg=True)
A.put(labs[3])
dep(D_PREP, NPREP)
a1_tile(A, S_TASK, 0, sc1=True)
A('s_mov_b32 %s, %d' % (s(S_C), D_A1))
signal(A, P_DBG, S_C)
A('s_branch %s' % lwork)
A.put(labs[5])
dep(D_A1, 80)
a2_task(A, S_TASK, 0, sc1=True)
A('s_mov_b32 %s, %d' % (s(S_C), D_A2))
signal(A, P_DBG, S_C)
A('s_branch %s' % lwork)
A.put(labs[6])
dep(D_A2, 81)
a3_tile(A, S_TASK, 0, sc1=True)
A('s_waitcnt vmcnt(0)')
A('s_branch %s' % lwork)
A.put(labs[7])
A('s_lshr_b32 %s, %s, 3' % (s(S_C), s(S_TASK)))
A('s_lshr_b32 %s, %s, 3' % (s(S_A), s(S_C)))
A('s_lshl_b32 %s, %s, 2' % (s(S_A), s(S_A)))
A('s_add_u32 %s, %s, %d' % (s(S_A), s(S_A), D_QD))
A('s_mov_b32 %s, 16' % s(S_B))
wait_ge(A, P_DBG, S_A, S_B, 1, sleep=int(os.environ.get('WSLEEP', 24)), wg=True)
kv_index(A, S_C, S_A, S_B)
A('s_cmp_lt_u32 %s, 8' % s(S_C))
A('s_cselect_b32 %s, 64, 32' % s(S_B))
wait_ge(A, P_DBG, S_A, S_B, 1, sleep=int(os.environ.get('WSLEEP', 24)), wg=True)
dep(D_INIT, NINIT)
def attn_mid():
    A('s_mov_b32 s64, s57')
    A('s_lshl_b32 %s, %s, 2' % (s(S_A), s(S_C)))
    A('s_add_u32 %s, %s, 0x%x' % (s(S_A), s(S_A), R_KVM))
    A('s_mov_b32 %s, 31' % s(S_B))
    wait_ge(A, P_WS, S_A, S_B, 14, signed=True, sleep=int(os.environ.get('WSLEEP', 8)), wg=True)
    A('s_mov_b32 s57, s64')
attn_task(A, S_TASK, 0, sc1=True, mid_wait=attn_mid)
A('s_lshl_b32 %s, %s, 2' % (s(S_C), s(S_C)))
A('s_add_u32 %s, %s, 0x%x' % (s(S_C), s(S_C), R_CNT))
signal(A, P_WS, S_C)
A('s_branch %s' % lattn)

A.put(los)
A('s_mov_b32 s72, %s' % s(S_H))
dep(D_INIT, NINIT)
if os.environ.get('GATE'):
    A('s_mov_b32 %s, %d' % (s(S_A), D_HL))
    A('s_mov_b32 %s, %d' % (s(S_B), int(os.environ['GATE'])))
    wait_ge(A, P_DBG, S_A, S_B, 1, sleep=16, wg=True, maxspin=40)
def os_wait(A, seg):
    A('s_lshl_b32 s73, %s, 2' % s(seg))
    A('s_add_u32 s73, s73, 0x%x' % R_CNT)
    A('s_mov_b32 s74, 7')
    global S_SPIN
    lp, ok = A.label('wl'), A.label('wo')
    A('s_waitcnt vmcnt(0)')
    A('s_cmp_lg_u32 s56, 0')
    A('s_cbranch_scc1 %s' % ok)
    A('v_mov_b32 v28, s73')
    A('s_mov_b32 s75, 0')
    A.put(lp)
    A('global_load_dword v29, v28, %s sc1' % s(P_WS, 2))
    A('s_waitcnt vmcnt(0)')
    A('v_readfirstlane_b32 s76, v29')
    A('s_cmp_ge_i32 s76, s74')
    A('s_cbranch_scc1 %s' % ok)
    A('s_sleep 12')
    A('s_add_u32 s75, s75, 1')
    A('s_cmp_lt_u32 s75, %d' % SPIN_MAX)
    A('s_cbranch_scc1 %s' % lp)
    A('s_branch %s' % abort)
    A.put(ok)
    A('s_barrier')
ostream(A, 72, wait_fn=os_wait, sc1=True, ngrp=NGRP)
A('s_branch %s' % done)

A.put(lh)
A('s_mov_b32 %s, -1' % s(S_KVOK))
stamps = bool(os.environ.get('STAMPSET'))
for i in range(8):
    A('s_mov_b32 %s, 0' % s(S_ST + i))
hdone = A.label('hdone')
h_cu(A, abort, hdone, kv_sc1=True, stamps=stamps, kv_wait=chain_kv_wait, prog_add=chain_prog_add, mode_wait=lambda: chain_start_wait(True))
A.put(hdone)
if stamps:
    A('s_lshl_b32 %s, %s, 2' % (s(S_T0), s(S_H)))
    A('s_add_u32 %s, %s, %s' % (s(S_T0), s(S_T0), s(S_WV)))
    A('s_lshl_b32 %s, %s, 5' % (s(S_T0), s(S_T0)))
    A('s_add_u32 %s, %s, 0x%x' % (s(S_T0), s(S_T0), 200 * MB))
    for i in range(8):
        A('v_mov_b32 %s, %s' % (v(40 + i), s(S_ST + i)))
    A('v_mov_b32 v2, 0')
    A('buffer_store_dwordx4 v[40:43], v2, %s, %s offen' % (s(S_WS, 4), s(S_T0)))
    A('buffer_store_dwordx4 v[44:47], v2, %s, %s offen offset:16' % (s(S_WS, 4), s(S_T0)))
A('s_branch %s' % done)
A.put(lv)
def v_prog(A):
    l = A.label('pa')
    A('s_cmp_lg_u32 %s, 3' % s(S_WV))
    A('s_cbranch_scc1 %s' % l)
    A('s_mov_b64 exec, 1')
    A('s_lshl_b32 %s, %s, 2' % (s(S_T0), s(S_STEP)))
    A('s_add_u32 %s, %s, 0x%x' % (s(S_T0), s(S_T0), R_KVM - (0 if os.environ.get('CHAIN', 'k_chain11') in ('k_chain7', 'k_chain11', 'k_chain12') else 4)))
    A('v_mov_b32 v22, %s' % s(S_T0))
    A('v_mov_b32 v23, 1')
    A('global_atomic_add v22, v23, %s' % s(P_WS, 2))
    A('s_mov_b64 exec, -1')
    A.put(l)
if os.environ.get('CHAIN', 'k_chain11') == 'k_chain10':
    v_cu(A, abort, done, prog_add=v_prog, init_wait=chain_init_wait, mode_wait=lambda: h_mode_wait(A, abort, D_V, D_SLOWV))
else:
    v_cu(A, abort, done, prog_add=v_prog, init_wait=lambda: chain_start_wait(False))
A.put(abort)
A('s_mov_b64 exec, -1')
A('v_mov_b32 v1, 252')
A('v_mov_b32 v2, 1')
A('global_atomic_add v1, v2, %s' % s(P_DBG, 2))
A.put(done)
A('s_endpgm')
descs.append(kernel_desc('main_kernel'))
launches.append('; @launch kernel=main_kernel grid=(256,1,1) block=(256,1,1) lds=%d' % max(L_END, OS_LDS, 131072))

A.lines = [l.replace('{SC}', ' sc1').replace(' lds sc1', ' sc1 lds') for l in A.lines]
txt = hdr() + '\n'.join(launches) + '\n.amdgcn_target "amdgcn-amd-amdhsa--gfx950"\n' + A.text() + ''.join(descs)
open(sys.argv[1] if len(sys.argv) > 1 else 'out.s', 'w').write(txt)
```

```python
import sys, os
from asmlib import Asm, v, a, s
from common import *
import gemm
gemm.STAMP = False
from gemm import Operand, gemm_tile, store_epilogue_bf16
import importlib
KC = importlib.import_module(os.environ.get('CHAIN', 'k_chain211'))
globals().update({k: getattr(KC, k) for k in dir(KC) if not k.startswith('__')})
from k_parta import *
from k_attn import *
from k_ostream import *

launches = []
descs = []
A = Asm()

def hdr():
    h = open('cdna_kernels/%s.s.ref' % NAME).read().split('\n')
    out = []
    for l in h:
        if l.startswith('; Override launch'):
            break
        out.append(l)
    return '\n'.join(out) + '\n'

D_H, D_V, D_SLOW, D_Q, D_PROG, D_PREP, D_A1, D_A2 = [4 * i for i in range(8)]
D_KV = 32
D_QD = 80
D_O = 112
D_AQ = 120
D_SLOWV = 124
D_HL = 128
D_P = 16
NAT = int(os.environ.get('NAT', 32))
R_CNT = WS_RING + 49152
NPREP_V = PREP_WG_F + PREP_WG_W + PREP_WG_C
NPREP = (NPREP_V + 7) // 8
NGRP = int(os.environ.get('NGRP', 3))
NV, NO = 32, 20 * NGRP

NINIT_V = RING_BYTES // 4096
NINIT = (NINIT_V + 7) // 8
D_INIT = 116
R_KVM = R_CNT + 256

kernel_begin(A, 'main_kernel')
abort, done = A.label('abort'), A.label('done')
S_TASK, S_A, S_B, S_C = 72, 73, 74, 75
S_KVOK = 99


def wait_ge(A, base_pair, off_sgpr, thr_sgpr, vt, signed=False, sleep=4, wg=False, maxspin=None):
    lp, ok = A.label('wl'), A.label('wo')
    if wg:
        A('v_readfirstlane_b32 %s, v0' % s(S_T3))
        A('s_cmp_ge_u32 %s, 64' % s(S_T3))
        A('s_cbranch_scc1 %s' % ok)
    A('v_mov_b32 %s, %s' % (v(vt), s(off_sgpr)))
    A('s_mov_b32 %s, 0' % s(S_SPIN))
    A.put(lp)
    A('global_load_dword %s, %s, %s sc1' % (v(vt + 1), v(vt), s(base_pair, 2)))
    A('s_waitcnt vmcnt(0)')
    A('v_readfirstlane_b32 %s, %s' % (s(S_T3), v(vt + 1)))
    A('s_cmp_ge_%s %s, %s' % ('i32' if signed else 'u32', s(S_T3), s(thr_sgpr)))
    A('s_cbranch_scc1 %s' % ok)
    A('s_sleep %d' % sleep)
    A('s_add_u32 %s, %s, 1' % (s(S_SPIN), s(S_SPIN)))
    A('s_cmp_lt_u32 %s, %d' % (s(S_SPIN), maxspin or SPIN_MAX))
    A('s_cbranch_scc1 %s' % lp)
    if not maxspin:
        A('s_branch %s' % abort)
    A.put(ok)
    if wg:
        A('s_barrier')


def signal(A, base_pair, off_sgpr):
    A('s_waitcnt vmcnt(0)')
    A('s_barrier')
    A('v_mov_b32 v1, %s' % s(off_sgpr))
    A('v_mov_b32 v2, 1')
    A('v_cmp_eq_u32 vcc, 0, v0')
    A('s_and_saveexec_b64 s[6:7], vcc')
    l = A.label('sg')
    A('s_cbranch_execz %s' % l)
    A('global_atomic_add v1, v2, %s' % s(base_pair, 2))
    A.put(l)
    A('s_mov_b64 exec, s[6:7]')


def kv_index(A, seg, dst, last):
    A('s_lshr_b32 %s, %s, 3' % (s(dst), s(seg)))
    A('s_lshl_b32 %s, %s, 2' % (s(dst), s(dst)))
    A('s_add_u32 %s, %s, %d' % (s(dst), s(dst), D_KV))


def chain_kv_wait(A, seg):
    ok, lp = A.label('kvok'), A.label('kvl')
    A('s_cmp_lt_i32 %s, %s' % (s(S_KVOK), s(seg)))
    A('s_cbranch_scc0 %s' % ok)
    A('v_mbcnt_lo_u32_b32 v36, -1, 0')
    A('v_min_u32 v36, 7, v36')
    A('v_lshlrev_b32 v36, 2, v36')
    A('s_mov_b32 %s, 0' % s(S_SPIN))
    A.put(lp)
    A('global_load_dword v37, v36, %s offset:%d sc1' % (s(P_DBG, 2), D_KV))
    A('s_waitcnt vmcnt(0)')
    A('v_cmp_eq_u32 vcc, 0, v36')
    A('v_lshrrev_b32 v38, 1, v37')
    A('v_cndmask_b32 v37, v37, v38, vcc')
    A('v_cmp_le_u32 vcc, 32, v37')
    A('s_and_b32 %s, vcc_lo, 0xff' % s(S_T1))
    A('s_ff0_i32_b32 %s, %s' % (s(S_T1), s(S_T1)))
    A('s_lshl_b32 %s, %s, 3' % (s(S_KVOK), s(S_T1)))
    A('s_sub_u32 %s, %s, 1' % (s(S_KVOK), s(S_KVOK)))
    A('s_cmp_lt_i32 %s, %s' % (s(S_KVOK), s(seg)))
    A('s_cbranch_scc0 %s' % ok)
    A('s_sleep 4')
    A('s_add_u32 %s, %s, 1' % (s(S_SPIN), s(S_SPIN)))
    A('s_cmp_lt_u32 %s, %d' % (s(S_SPIN), SPIN_MAX))
    A('s_cbranch_scc1 %s' % lp)
    A('s_branch %s' % abort)
    A.put(ok)


def chain_init_wait():
    if os.environ.get('GATE'):
        bcast_atomic(A, D_HL, 1, S_T1)
        A('v_and_b32 v1, 63, v0')
    A('s_mov_b32 %s, %d' % (s(S_T1), D_INIT))
    A('s_mov_b32 %s, %d' % (s(S_T2), NINIT))
    wait_ge(A, P_DBG, S_T1, S_T2, 2, sleep=2)


def chain_start_wait(is_h):
    lp, ok = A.label('sw'), A.label('swo')
    NEAR = 'S_P8' in globals()
    if NEAR and not is_h:
        lm = A.label('nm')
        A('s_cmp_lg_u32 %s, 0' % s(S_H))
        A('s_cbranch_scc1 %s' % lm)
        A('s_cmp_lg_u32 %s, 0' % s(S_WV))
        A('s_cbranch_scc1 %s' % lm)
        A('s_mov_b64 exec, 1')
        A('v_mov_b32 v3, 0')
        for c in range(2):
            A('v_mov_b32 v2, 0x%x' % (R_MS + 4096 * 3 + c * 8192 - 4096 * 2 + 3968))
            A('s_mov_b32 %s, -1' % s(S_T2 + c))
            for it in range(6):
                A('s_memtime s[4:5]')
                A('s_waitcnt lgkmcnt(0)')
                A('global_atomic_add v4, v2, v3, %s sc0' % s(P_WS, 2))
                A('s_waitcnt vmcnt(0)')
                A('s_memtime s[6:7]')
                A('s_waitcnt lgkmcnt(0)')
                A('s_sub_u32 s6, s6, s4')
                A('s_min_u32 %s, %s, s6' % (s(S_T2 + c), s(S_T2 + c)))
        A('s_cmp_lt_u32 %s, %s' % (s(S_T3), s(S_T2)))
        A('s_cselect_b32 %s, 2, 1' % s(S_T0))
        if os.environ.get('FORCEP'):
            A('s_mov_b32 %s, %s' % (s(S_T0), os.environ['FORCEP']))
        A('v_mov_b32 v2, %d' % D_P)
        A('v_mov_b32 v3, %s' % s(S_T0))
        A('global_atomic_add v2, v3, %s' % s(P_DBG, 2))
        A('s_mov_b64 exec, -1')
        A.put(lm)
    A('v_mbcnt_lo_u32_b32 v2, -1, 0')
    A('v_min_u32 v2, 31, v2')
    A('v_lshlrev_b32 v2, 2, v2')
    A('s_mov_b32 %s, 0' % s(S_SPIN))
    A.put(lp)
    A('global_load_dword v3, v2, %s sc1' % s(P_DBG, 2))
    A('s_waitcnt vmcnt(0)')
    A('v_readlane_b32 %s, v3, %d' % (s(S_T0), D_INIT // 4))
    A('v_readlane_b32 %s, v3, 0' % s(S_T1))
    A('v_readlane_b32 %s, v3, %d' % (s(S_T2), D_KV // 4))
    A('v_readlane_b32 %s, v3, %d' % (s(S_T3), D_SLOW // 4))
    A('s_cmp_ge_u32 %s, %d' % (s(S_T0), NINIT))
    A('s_cselect_b32 %s, 1, 0' % s(S_T0))
    if NEAR:
        A('v_readlane_b32 %s, v3, %d' % (s(S_P8), D_P // 4))
        A('s_cmp_lg_u32 %s, 0' % s(S_P8))
        A('s_cselect_b32 %s, %s, 0' % (s(S_T0), s(S_T0)))
    if is_h:
        A('s_cmp_ge_u32 %s, 32' % s(S_T1))
        A('s_cselect_b32 %s, %s, 0' % (s(S_T0), s(S_T0)))
        A('s_cmp_ge_u32 %s, 64' % s(S_T2))
        A('s_cselect_b32 %s, %s, 0' % (s(S_T0), s(S_T0)))
    A('s_cmp_eq_u32 %s, 1' % s(S_T0))
    A('s_cbranch_scc1 %s' % ok)
    A('s_sleep 4')
    A('s_add_u32 %s, %s, 1' % (s(S_SPIN), s(S_SPIN)))
    A('s_cmp_lt_u32 %s, %d' % (s(S_SPIN), SPIN_MAX))
    A('s_cbranch_scc1 %s' % lp)
    A('s_branch %s' % abort)
    A.put(ok)
    if NEAR:
        A('s_sub_u32 %s, %s, 1' % (s(S_P8), s(S_P8)))
        A('s_lshl_b32 %s, %s, 13' % (s(S_P8), s(S_P8)))
    if is_h:
        A('s_cmp_eq_u32 %s, 0' % s(S_T3))
        A('s_cselect_b32 %s, 1, 0' % s(S_FAST))
        A('s_mov_b32 %s, 7' % s(S_KVOK))


def chain_prog_add(A):
    l = A.label('pa')
    A('s_cmp_lg_u32 %s, 3' % s(S_WV))
    A('s_cbranch_scc1 %s' % l)
    A('s_mov_b64 exec, 1')
    A('v_mov_b32 v36, %d' % D_PROG)
    A('v_mov_b32 v37, 1')
    A('global_atomic_add v36, v37, %s' % s(P_DBG, 2))
    A('s_mov_b64 exec, -1')
    A.put(l)


lattn = A.label('attnq')
lh, lv, lo, los, lwork = A.label('hrole'), A.label('vrole'), A.label('other'), A.label('orole'), A.label('work')
A('s_cmp_ge_u32 s2, 256')
A('s_cbranch_scc1 %s' % done)
load_ptrs(A)
A('s_getreg_b32 s3, hwreg(HW_REG_XCC_ID)')
A('s_and_b32 s3, s3, 7')
A('s_cmp_lg_u32 s3, %d' % int(os.environ.get('HXCD', 0)))
A('s_cbranch_scc1 %s' % lo)
bcast_atomic(A, D_H, 1, S_H)
A('s_cmp_lt_u32 %s, 32' % s(S_H))
A('s_cbranch_scc1 %s' % lh)
A.put(lo)
lo2 = A.label('other2')
A('s_cmp_lg_u32 s3, %d' % int(os.environ.get('VXCD', 1)))
A('s_cbranch_scc1 %s' % lo2)
bcast_atomic(A, D_V, 1, S_H)
A('s_cmp_lt_u32 %s, %d' % (s(S_H), NV))
A('s_cbranch_scc1 %s' % lv)
A.put(lo2)
bcast_atomic(A, D_O, 1, S_H)
A('s_mov_b32 s82, %s' % s(S_H))
A('s_mov_b32 s76, 0')
A('s_mov_b32 s77, 0')
A.put(lwork)
lchk = A.label('chk')
A('s_cmp_lg_u32 s76, 0')
A('s_cbranch_scc1 %s' % lchk)
A('s_cmp_gt_u32 s77, %d' % NINIT)
A('s_cselect_b32 s76, 1, 0')
A.put(lchk)
lnc = A.label('nc')
lnc2 = A.label('nc2')
A('s_cmp_lt_u32 s82, %d' % (NO + NAT))
A('s_cbranch_scc1 %s' % lnc2)
A('s_cmp_lg_u32 s76, 1')
A('s_cbranch_scc1 %s' % lnc)
bcast_atomic(A, D_H, 0, S_T0)
A('s_cmp_ge_u32 %s, 32' % s(S_T0))
A('s_cbranch_scc1 %s' % lnc)
bcast_atomic(A, D_SLOW, 1, S_T0)
bcast_atomic(A, D_H, 1, S_H)
A('s_cmp_lt_u32 %s, 32' % s(S_H))
A('s_cbranch_scc1 %s' % lh)
A.put(lnc)
A('s_cmp_lg_u32 s76, 1')
A('s_cbranch_scc1 %s' % lnc2)
bcast_atomic(A, D_V, 0, S_T0)
A('s_cmp_ge_u32 %s, %d' % (s(S_T0), NV))
A('s_cbranch_scc1 %s' % lnc2)
bcast_atomic(A, D_SLOWV, 1, S_T0)
bcast_atomic(A, D_V, 1, S_H)
A('s_cmp_lt_u32 %s, %d' % (s(S_H), NV))
A('s_cbranch_scc1 %s' % lv)
A.put(lnc2)
A('s_cmp_eq_u32 s76, 1')
A('s_cselect_b32 s76, 2, s76')
lgen = A.label('gen')
A('s_cmp_lg_u32 s76, 2')
A('s_cbranch_scc1 %s' % lgen)
A('s_mov_b32 %s, s82' % s(S_H))
A('s_cmp_lt_u32 s82, %d' % NO)
A('s_cbranch_scc1 %s' % los)
A('s_cmp_lt_u32 s82, %d' % (NO + NAT))
A('s_cbranch_scc1 %s' % lattn)
A.put(lgen)
bcast_atomic(A, D_Q, 1, S_TASK)
A('s_add_u32 s77, %s, 1' % s(S_TASK))


def qkv2(WN):
    A('s_lshr_b32 s58, %s, 4' % s(S_A))
    A('s_and_b32 s56, %s, 15' % s(S_A))
    A('s_cmp_eq_u32 s58, 1')
    A('s_cselect_b32 s44, %s, %s' % (s(P_WK), s(P_WQ)))
    A('s_cselect_b32 s45, %s, %s' % (s(P_WK + 1), s(P_WQ + 1)))
    A('s_cmp_eq_u32 s58, 2')
    A('s_cselect_b32 s44, %s, s44' % s(P_WV))
    A('s_cselect_b32 s45, %s, s45' % s(P_WV + 1))
    A('s_and_b32 s45, s45, 0xffff')
    A('s_mov_b32 s46, 0x%x' % (640 * 8192))
    A('s_mov_b32 s47, 0x00020000')
    make_srd(A, 48, P_BX, 2048 * 1280)
    make_srd(A, 52, P_WS, WS_SIZE)
    A('s_lshl_b32 s66, s56, 9')
    A('s_mul_i32 s67, %s, 1280' % s(S_B))
    A('s_lshl_b32 s68, s58, 24')
    A('s_lshl_b32 s59, %s, 13' % s(S_B))
    A('s_add_u32 s68, s68, s59')
    A('s_add_u32 s68, s68, s66')
    gemm_tile(A, 4, WN, 640, Operand('IC', 44, 8192, 66), Operand('KC', 48, 1280, 67), store_epilogue_bf16(A, 52, 68, 8192, sc1=True), 0)


bounds = [64, 320, NPREP, 80, 0, 81, 80, 0]
lb1 = A.label('b1')
linit = A.label('tinit')
A('s_cmp_lt_u32 %s, %d' % (s(S_TASK), NINIT))
A('s_cbranch_scc1 %s' % linit)
A('s_sub_u32 %s, %s, %d' % (s(S_TASK), s(S_TASK), NINIT))
A('s_cmp_lt_u32 %s, 32' % s(S_TASK))
A('s_cbranch_scc1 %s' % lb1)
A('s_sub_u32 %s, %s, 32' % (s(S_TASK), s(S_TASK)))
labs = [A.label('task') for _ in bounds]
for b, l in zip(bounds, labs):
    A('s_cmp_lt_u32 %s, %d' % (s(S_TASK), b))
    A('s_cbranch_scc1 %s' % l)
    A('s_sub_u32 %s, %s, %d' % (s(S_TASK), s(S_TASK), b))
A('s_mov_b32 %s, s82' % s(S_H))
A('s_cmp_lt_u32 s82, %d' % NO)
A('s_cbranch_scc1 %s' % los)
A.put(lattn)
bcast_atomic(A, D_AQ, 1, S_TASK)
A('s_cmp_lt_u32 %s, 512' % s(S_TASK))
A('s_cbranch_scc1 %s' % labs[7])
A('s_branch %s' % done)
lbig = A.label('big')
A.put(linit)
make_srd(A, 44, P_WS, WS_SIZE)
make_srd(A, 48, P_MEM0, 10240)
A('s_lshl_b32 %s, %s, 3' % (s(S_A), s(S_TASK)))
A('s_add_u32 %s, %s, 8' % (s(S_B), s(S_A)))
A('s_min_u32 %s, %s, %d' % (s(S_B), s(S_B), NINIT_V))
lip = A.label('il')
A.put(lip)
ring_init_body(A, S_A)
A('s_add_u32 %s, %s, 1' % (s(S_A), s(S_A)))
A('s_cmp_lt_u32 %s, %s' % (s(S_A), s(S_B)))
A('s_cbranch_scc1 %s' % lip)
A('s_mov_b32 %s, %d' % (s(S_C), D_INIT))
signal(A, P_DBG, S_C)
A('s_branch %s' % lwork)
A.put(labs[0])
A('s_and_b32 %s, %s, 31' % (s(S_A), s(S_TASK)))
A('s_add_u32 %s, %s, 16' % (s(S_A), s(S_A)))
A('s_lshr_b32 %s, %s, 5' % (s(S_C), s(S_TASK)))
A('s_lshl_b32 %s, %s, 7' % (s(S_B), s(S_C)))
A('s_mov_b32 %s, %d' % (s(S_C), D_KV))
qkv2(2)
signal(A, P_DBG, S_C)
A('s_branch %s' % lwork)
A.put(labs[1])
if os.environ.get('GATE'):
    lg_ = A.label('gate')
    A('s_cmp_ge_u32 %s, 160' % s(S_TASK))
    A('s_cbranch_scc1 %s' % lg_)
    A('s_mov_b32 %s, %d' % (s(S_A), D_HL))
    A('s_mov_b32 %s, %d' % (s(S_B), int(os.environ['GATE'])))
    wait_ge(A, P_DBG, S_A, S_B, 1, sleep=16, wg=True, maxspin=40)
    A.put(lg_)
A('s_add_u32 %s, %s, 32' % (s(S_TASK), s(S_TASK)))
A.put(lb1)
order = [(1, 1), (2, 1), (1, 2), (2, 2), (0, 0), (0, 1), (1, 3), (2, 3), (0, 2), (1, 4), (2, 4), (0, 3), (1, 5), (2, 5), (0, 4), (1, 6), (2, 6), (0, 5), (1, 7), (2, 7), (0, 6), (0, 7), (0, 0), (0, 0)]
words = [sum(((k * 8 + rb) << (5 * i)) for i, (k, rb) in enumerate(order[6 * w:6 * w + 6])) for w in range(4)]
A('s_lshr_b32 %s, %s, 4' % (s(S_C), s(S_TASK)))
A('s_mul_i32 %s, %s, 43' % (s(S_A), s(S_C)))
A('s_lshr_b32 %s, %s, 8' % (s(S_A), s(S_A)))
A('s_mul_i32 %s, %s, 6' % (s(S_B), s(S_A)))
A('s_sub_u32 %s, %s, %s' % (s(S_C), s(S_C), s(S_B)))
A('s_mul_i32 %s, %s, 5' % (s(S_C), s(S_C)))
A('s_mov_b32 %s, 0x%x' % (s(S_B), words[0]))
for w in range(1, 4):
    A('s_cmp_eq_u32 %s, %d' % (s(S_A), w))
    A('s_cselect_b32 %s, 0x%x, %s' % (s(S_B), words[w], s(S_B)))
A('s_lshr_b32 %s, %s, %s' % (s(S_B), s(S_B), s(S_C)))
A('s_bfe_u32 %s, %s, 0x20003' % (s(S_T0), s(S_B)))
A('s_and_b32 %s, %s, 7' % (s(S_C), s(S_B)))
A('s_and_b32 %s, %s, 15' % (s(S_A), s(S_TASK)))
A('s_lshl_b32 %s, %s, 4' % (s(S_T1), s(S_T0)))
A('s_add_u32 %s, %s, %s' % (s(S_A), s(S_A), s(S_T1)))
A('s_lshl_b32 %s, %s, 8' % (s(S_B), s(S_C)))
A('s_lshl_b32 %s, %s, 2' % (s(S_C), s(S_C)))
A('s_cmp_eq_u32 %s, 0' % s(S_T0))
A('s_cselect_b32 %s, %d, %d' % (s(S_T0), D_QD, D_KV))
A('s_add_u32 %s, %s, %s' % (s(S_C), s(S_C), s(S_T0)))
A.put(lbig)
qkv2(4)
signal(A, P_DBG, S_C)
A('s_branch %s' % lwork)
A.put(labs[4])
A('s_and_b32 %s, %s, 15' % (s(S_A), s(S_TASK)))
A('s_lshr_b32 %s, %s, 4' % (s(S_C), s(S_TASK)))
A('s_lshl_b32 %s, %s, 8' % (s(S_B), s(S_C)))
A('s_lshl_b32 %s, %s, 2' % (s(S_C), s(S_C)))
A('s_add_u32 %s, %s, %d' % (s(S_C), s(S_C), D_QD))
A('s_branch %s' % lbig)
A.put(labs[2])
make_srd(A, 44, P_WS, WS_SIZE)
make_srd(A, 48, P_WR, 2048 * 642)
make_srd(A, 52, P_WI, 2048 * 642)
A('s_lshl_b32 %s, %s, 3' % (s(S_A), s(S_TASK)))
A('s_add_u32 %s, %s, 8' % (s(S_B), s(S_A)))
A('s_min_u32 %s, %s, %d' % (s(S_B), s(S_B), NPREP_V))
lp = A.label('pl')
A.put(lp)
l1, l2, le = A.label('pp'), A.label('pp'), A.label('pp')
A('s_mov_b32 %s, %s' % (s(S_C), s(S_A)))
A('s_cmp_ge_u32 %s, %d' % (s(S_C), PREP_WG_F))
A('s_cbranch_scc1 %s' % l1)
prep_f2g2(A, S_C)
A('s_branch %s' % le)
A.put(l1)
A('s_sub_u32 %s, %s, %d' % (s(S_C), s(S_C), PREP_WG_F))
A('s_cmp_ge_u32 %s, %d' % (s(S_C), PREP_WG_W))
A('s_cbranch_scc1 %s' % l2)
prep_wt(A, S_C)
A('s_branch %s' % le)
A.put(l2)
A('s_sub_u32 %s, %s, %d' % (s(S_C), s(S_C), PREP_WG_W))
prep_c2(A, S_C)
A.put(le)
A('s_add_u32 %s, %s, 1' % (s(S_A), s(S_A)))
A('s_cmp_lt_u32 %s, %s' % (s(S_A), s(S_B)))
A('s_cbranch_scc1 %s' % lp)
A('s_mov_b32 %s, %d' % (s(S_C), D_PREP))
signal(A, P_DBG, S_C)
A('s_branch %s' % lwork)


def dep(off, thr):
    A('s_mov_b32 %s, %d' % (s(S_A), off))
    A('s_mov_b32 %s, %d' % (s(S_B), thr))
    wait_ge(A, P_DBG, S_A, S_B, 1, sleep=int(os.environ.get('WSLEEP', 24)), wg=True)
A.put(labs[3])
dep(D_PREP, NPREP)
a1_tile(A, S_TASK, 0, sc1=True)
A('s_mov_b32 %s, %d' % (s(S_C), D_A1))
signal(A, P_DBG, S_C)
A('s_branch %s' % lwork)
A.put(labs[5])
dep(D_A1, 80)
a2_task(A, S_TASK, 0, sc1=True)
A('s_mov_b32 %s, %d' % (s(S_C), D_A2))
signal(A, P_DBG, S_C)
A('s_branch %s' % lwork)
A.put(labs[6])
dep(D_A2, 81)
a3_tile(A, S_TASK, 0, sc1=True)
A('s_waitcnt vmcnt(0)')
A('s_branch %s' % lwork)
A.put(labs[7])
A('s_lshr_b32 %s, %s, 3' % (s(S_C), s(S_TASK)))
A('s_lshr_b32 %s, %s, 3' % (s(S_A), s(S_C)))
A('s_lshl_b32 %s, %s, 2' % (s(S_A), s(S_A)))
A('s_add_u32 %s, %s, %d' % (s(S_A), s(S_A), D_QD))
A('s_mov_b32 %s, 16' % s(S_B))
wait_ge(A, P_DBG, S_A, S_B, 1, sleep=int(os.environ.get('WSLEEP', 24)), wg=True)
kv_index(A, S_C, S_A, S_B)
A('s_cmp_lt_u32 %s, 8' % s(S_C))
A('s_cselect_b32 %s, 64, 32' % s(S_B))
wait_ge(A, P_DBG, S_A, S_B, 1, sleep=int(os.environ.get('WSLEEP', 24)), wg=True)
dep(D_INIT, NINIT)
def attn_mid():
    A('s_mov_b32 s64, s57')
    A('s_lshl_b32 %s, %s, 2' % (s(S_A), s(S_C)))
    A('s_add_u32 %s, %s, 0x%x' % (s(S_A), s(S_A), R_KVM))
    A('s_mov_b32 %s, 31' % s(S_B))
    wait_ge(A, P_WS, S_A, S_B, 14, signed=True, sleep=int(os.environ.get('WSLEEP', 8)), wg=True)
    A('s_mov_b32 s57, s64')
attn_task(A, S_TASK, 0, sc1=True, mid_wait=attn_mid)
A('s_lshl_b32 %s, %s, 2' % (s(S_C), s(S_C)))
A('s_add_u32 %s, %s, 0x%x' % (s(S_C), s(S_C), R_CNT))
signal(A, P_WS, S_C)
A('s_branch %s' % lattn)

A.put(los)
A('s_mov_b32 s72, %s' % s(S_H))
dep(D_INIT, NINIT)
if os.environ.get('GATE'):
    A('s_mov_b32 %s, %d' % (s(S_A), D_HL))
    A('s_mov_b32 %s, %d' % (s(S_B), int(os.environ['GATE'])))
    wait_ge(A, P_DBG, S_A, S_B, 1, sleep=16, wg=True, maxspin=40)
def os_wait(A, seg):
    A('s_lshl_b32 s73, %s, 2' % s(seg))
    A('s_add_u32 s73, s73, 0x%x' % R_CNT)
    A('s_mov_b32 s74, 7')
    global S_SPIN
    lp, ok = A.label('wl'), A.label('wo')
    A('s_waitcnt vmcnt(0)')
    A('s_cmp_lg_u32 s56, 0')
    A('s_cbranch_scc1 %s' % ok)
    A('v_mov_b32 v28, s73')
    A('s_mov_b32 s75, 0')
    A.put(lp)
    A('global_load_dword v29, v28, %s sc1' % s(P_WS, 2))
    A('s_waitcnt vmcnt(0)')
    A('v_readfirstlane_b32 s76, v29')
    A('s_cmp_ge_i32 s76, s74')
    A('s_cbranch_scc1 %s' % ok)
    A('s_sleep 12')
    A('s_add_u32 s75, s75, 1')
    A('s_cmp_lt_u32 s75, %d' % SPIN_MAX)
    A('s_cbranch_scc1 %s' % lp)
    A('s_branch %s' % abort)
    A.put(ok)
    A('s_barrier')
ostream(A, 72, wait_fn=os_wait, sc1=True, ngrp=NGRP)
A('s_branch %s' % done)

A.put(lh)
A('s_mov_b32 %s, -1' % s(S_KVOK))
stamps = bool(os.environ.get('STAMPSET'))
for i in range(8):
    A('s_mov_b32 %s, 0' % s(S_ST + i))
hdone = A.label('hdone')
h_cu(A, abort, hdone, kv_sc1=True, stamps=stamps, kv_wait=chain_kv_wait, prog_add=chain_prog_add, mode_wait=lambda: chain_start_wait(True))
A.put(hdone)
if stamps:
    A('s_lshl_b32 %s, %s, 2' % (s(S_T0), s(S_H)))
    A('s_add_u32 %s, %s, %s' % (s(S_T0), s(S_T0), s(S_WV)))
    A('s_lshl_b32 %s, %s, 5' % (s(S_T0), s(S_T0)))
    A('s_add_u32 %s, %s, 0x%x' % (s(S_T0), s(S_T0), 200 * MB))
    for i in range(8):
        A('v_mov_b32 %s, %s' % (v(40 + i), s(S_ST + i)))
    A('v_mov_b32 v2, 0')
    A('buffer_store_dwordx4 v[40:43], v2, %s, %s offen' % (s(S_WS, 4), s(S_T0)))
    A('buffer_store_dwordx4 v[44:47], v2, %s, %s offen offset:16' % (s(S_WS, 4), s(S_T0)))
A('s_branch %s' % done)
A.put(lv)
def v_prog(A):
    l = A.label('pa')
    A('s_cmp_lg_u32 %s, 3' % s(S_WV))
    A('s_cbranch_scc1 %s' % l)
    A('s_mov_b64 exec, 1')
    A('s_lshl_b32 %s, %s, 2' % (s(S_T0), s(S_STEP)))
    A('s_add_u32 %s, %s, 0x%x' % (s(S_T0), s(S_T0), R_KVM - (0 if os.environ.get('CHAIN', 'k_chain211') in ('k_chain7', 'k_chain11', 'k_chain12', 'k_chain13', 'k_chain211', 'k_chain212', 'k_chain213') else 4)))
    A('v_mov_b32 v22, %s' % s(S_T0))
    A('v_mov_b32 v23, 1')
    A('global_atomic_add v22, v23, %s' % s(P_WS, 2))
    A('s_mov_b64 exec, -1')
    A.put(l)
if os.environ.get('CHAIN', 'k_chain211') == 'k_chain10':
    v_cu(A, abort, done, prog_add=v_prog, init_wait=chain_init_wait, mode_wait=lambda: h_mode_wait(A, abort, D_V, D_SLOWV))
else:
    v_cu(A, abort, done, prog_add=v_prog, init_wait=lambda: chain_start_wait(False))
A.put(abort)
A('s_mov_b64 exec, -1')
A('v_mov_b32 v1, 252')
A('v_mov_b32 v2, 1')
A('global_atomic_add v1, v2, %s' % s(P_DBG, 2))
A.put(done)
A('s_endpgm')
descs.append(kernel_desc('main_kernel'))
launches.append('; @launch kernel=main_kernel grid=(256,1,1) block=(256,1,1) lds=%d' % max(L_END, OS_LDS, 131072))

A.lines = [l.replace('{SC}', ' sc1').replace(' lds sc1', ' sc1 lds') for l in A.lines]
txt = hdr() + '\n'.join(launches) + '\n.amdgcn_target "amdgcn-amd-amdhsa--gfx950"\n' + A.text() + ''.join(descs)
open(sys.argv[1] if len(sys.argv) > 1 else 'out.s', 'w').write(txt)
```

```python
import sys, os
from asmlib import Asm, v, a, s
from common import *
import gemm
gemm.STAMP = False
from gemm import Operand, gemm_tile, store_epilogue_bf16
import importlib
KC = importlib.import_module(os.environ.get('CHAIN', 'k_chain211'))
globals().update({k: getattr(KC, k) for k in dir(KC) if not k.startswith('__')})
from k_parta import *
from k_attn import *
from k_ostream import *

launches = []
descs = []
A = Asm()

def hdr():
    h = open('cdna_kernels/%s.s.ref' % NAME).read().split('\n')
    out = []
    for l in h:
        if l.startswith('; Override launch'):
            break
        out.append(l)
    return '\n'.join(out) + '\n'

D_H, D_V, D_SLOW, D_Q, D_PROG, D_PREP, D_A1, D_A2 = [4 * i for i in range(8)]
D_KV = 32
D_QD = 80
D_O = 112
D_AQ = 120
D_SLOWV = 124
D_HL = 128
D_P = 16
NAT = int(os.environ.get('NAT', 32))
R_CNT = WS_RING + 49152
NPREP_V = PREP_WG_F + PREP_WG_W + PREP_WG_C
NPREP = (NPREP_V + 7) // 8
NGRP = int(os.environ.get('NGRP', 3))
NV, NO = 32, 20 * NGRP

NINIT_V = RING_BYTES // 4096
NINIT = (NINIT_V + 7) // 8
D_INIT = 116
R_KVM = R_CNT + 256

kernel_begin(A, 'main_kernel')
abort, done = A.label('abort'), A.label('done')
S_TASK, S_A, S_B, S_C = 72, 73, 74, 75
S_KVOK = 99


def wait_ge(A, base_pair, off_sgpr, thr_sgpr, vt, signed=False, sleep=4, wg=False, maxspin=None):
    lp, ok = A.label('wl'), A.label('wo')
    if wg:
        A('v_readfirstlane_b32 %s, v0' % s(S_T3))
        A('s_cmp_ge_u32 %s, 64' % s(S_T3))
        A('s_cbranch_scc1 %s' % ok)
    A('v_mov_b32 %s, %s' % (v(vt), s(off_sgpr)))
    A('s_mov_b32 %s, 0' % s(S_SPIN))
    A.put(lp)
    A('global_load_dword %s, %s, %s sc1' % (v(vt + 1), v(vt), s(base_pair, 2)))
    A('s_waitcnt vmcnt(0)')
    A('v_readfirstlane_b32 %s, %s' % (s(S_T3), v(vt + 1)))
    A('s_cmp_ge_%s %s, %s' % ('i32' if signed else 'u32', s(S_T3), s(thr_sgpr)))
    A('s_cbranch_scc1 %s' % ok)
    A('s_sleep %d' % sleep)
    A('s_add_u32 %s, %s, 1' % (s(S_SPIN), s(S_SPIN)))
    A('s_cmp_lt_u32 %s, %d' % (s(S_SPIN), maxspin or SPIN_MAX))
    A('s_cbranch_scc1 %s' % lp)
    if not maxspin:
        A('s_branch %s' % abort)
    A.put(ok)
    if wg:
        A('s_barrier')


def signal(A, base_pair, off_sgpr):
    A('s_waitcnt vmcnt(0)')
    A('s_barrier')
    A('v_mov_b32 v1, %s' % s(off_sgpr))
    A('v_mov_b32 v2, 1')
    A('v_cmp_eq_u32 vcc, 0, v0')
    A('s_and_saveexec_b64 s[6:7], vcc')
    l = A.label('sg')
    A('s_cbranch_execz %s' % l)
    A('global_atomic_add v1, v2, %s' % s(base_pair, 2))
    A.put(l)
    A('s_mov_b64 exec, s[6:7]')


def kv_index(A, seg, dst, last):
    A('s_lshr_b32 %s, %s, 3' % (s(dst), s(seg)))
    A('s_lshl_b32 %s, %s, 2' % (s(dst), s(dst)))
    A('s_add_u32 %s, %s, %d' % (s(dst), s(dst), D_KV))


def chain_kv_wait(A, seg):
    ok, lp = A.label('kvok'), A.label('kvl')
    A('s_cmp_lt_i32 %s, %s' % (s(S_KVOK), s(seg)))
    A('s_cbranch_scc0 %s' % ok)
    A('v_mbcnt_lo_u32_b32 v36, -1, 0')
    A('v_min_u32 v36, 7, v36')
    A('v_lshlrev_b32 v36, 2, v36')
    A('s_mov_b32 %s, 0' % s(S_SPIN))
    A.put(lp)
    A('global_load_dword v37, v36, %s offset:%d sc1' % (s(P_DBG, 2), D_KV))
    A('s_waitcnt vmcnt(0)')
    A('v_cmp_eq_u32 vcc, 0, v36')
    A('v_lshrrev_b32 v38, 1, v37')
    A('v_cndmask_b32 v37, v37, v38, vcc')
    A('v_cmp_le_u32 vcc, 32, v37')
    A('s_and_b32 %s, vcc_lo, 0xff' % s(S_T1))
    A('s_ff0_i32_b32 %s, %s' % (s(S_T1), s(S_T1)))
    A('s_lshl_b32 %s, %s, 3' % (s(S_KVOK), s(S_T1)))
    A('s_sub_u32 %s, %s, 1' % (s(S_KVOK), s(S_KVOK)))
    A('s_cmp_lt_i32 %s, %s' % (s(S_KVOK), s(seg)))
    A('s_cbranch_scc0 %s' % ok)
    A('s_sleep 4')
    A('s_add_u32 %s, %s, 1' % (s(S_SPIN), s(S_SPIN)))
    A('s_cmp_lt_u32 %s, %d' % (s(S_SPIN), SPIN_MAX))
    A('s_cbranch_scc1 %s' % lp)
    A('s_branch %s' % abort)
    A.put(ok)


def chain_init_wait():
    if os.environ.get('GATE'):
        bcast_atomic(A, D_HL, 1, S_T1)
        A('v_and_b32 v1, 63, v0')
    A('s_mov_b32 %s, %d' % (s(S_T1), D_INIT))
    A('s_mov_b32 %s, %d' % (s(S_T2), NINIT))
    wait_ge(A, P_DBG, S_T1, S_T2, 2, sleep=2)


def chain_start_wait(is_h):
    lp, ok = A.label('sw'), A.label('swo')
    NEAR = 'S_P8' in globals()
    if NEAR and not is_h:
        lm = A.label('nm')
        A('s_cmp_lg_u32 %s, 0' % s(S_H))
        A('s_cbranch_scc1 %s' % lm)
        A('s_cmp_lg_u32 %s, 0' % s(S_WV))
        A('s_cbranch_scc1 %s' % lm)
        A('s_mov_b64 exec, 1')
        A('v_mov_b32 v3, 0')
        for c in range(2):
            A('v_mov_b32 v2, 0x%x' % (R_MS + 4096 * 3 + c * 8192 - 4096 * 2 + 3968))
            A('s_mov_b32 %s, -1' % s(S_T2 + c))
            for it in range(6):
                A('s_memtime s[4:5]')
                A('s_waitcnt lgkmcnt(0)')
                A('global_atomic_add v4, v2, v3, %s sc0' % s(P_WS, 2))
                A('s_waitcnt vmcnt(0)')
                A('s_memtime s[6:7]')
                A('s_waitcnt lgkmcnt(0)')
                A('s_sub_u32 s6, s6, s4')
                A('s_min_u32 %s, %s, s6' % (s(S_T2 + c), s(S_T2 + c)))
        A('s_cmp_lt_u32 %s, %s' % (s(S_T3), s(S_T2)))
        A('s_cselect_b32 %s, 2, 1' % s(S_T0))
        if os.environ.get('FORCEP'):
            A('s_mov_b32 %s, %s' % (s(S_T0), os.environ['FORCEP']))
        A('s_min_u32 %s, %s, 0x3fff' % (s(S_T2), s(S_T2)))
        A('s_min_u32 %s, %s, 0x3fff' % (s(S_T3), s(S_T3)))
        A('s_lshl_b32 %s, %s, 4' % (s(S_T2), s(S_T2)))
        A('s_lshl_b32 %s, %s, 18' % (s(S_T3), s(S_T3)))
        A('s_or_b32 %s, %s, %s' % (s(S_T0), s(S_T0), s(S_T2)))
        A('s_or_b32 %s, %s, %s' % (s(S_T0), s(S_T0), s(S_T3)))
        A('v_mov_b32 v2, %d' % D_P)
        A('v_mov_b32 v3, %s' % s(S_T0))
        A('global_atomic_add v2, v3, %s' % s(P_DBG, 2))
        A('s_mov_b64 exec, -1')
        A.put(lm)
    A('v_mbcnt_lo_u32_b32 v2, -1, 0')
    A('v_min_u32 v2, 31, v2')
    A('v_lshlrev_b32 v2, 2, v2')
    A('s_mov_b32 %s, 0' % s(S_SPIN))
    A.put(lp)
    A('global_load_dword v3, v2, %s sc1' % s(P_DBG, 2))
    A('s_waitcnt vmcnt(0)')
    A('v_readlane_b32 %s, v3, %d' % (s(S_T0), D_INIT // 4))
    A('v_readlane_b32 %s, v3, 0' % s(S_T1))
    A('v_readlane_b32 %s, v3, %d' % (s(S_T2), D_KV // 4))
    A('v_readlane_b32 %s, v3, %d' % (s(S_T3), D_SLOW // 4))
    A('s_cmp_ge_u32 %s, %d' % (s(S_T0), NINIT))
    A('s_cselect_b32 %s, 1, 0' % s(S_T0))
    if NEAR:
        A('v_readlane_b32 %s, v3, %d' % (s(S_P8), D_P // 4))
        A('s_cmp_lg_u32 %s, 0' % s(S_P8))
        A('s_cselect_b32 %s, %s, 0' % (s(S_T0), s(S_T0)))
    if is_h:
        A('s_cmp_ge_u32 %s, 32' % s(S_T1))
        A('s_cselect_b32 %s, %s, 0' % (s(S_T0), s(S_T0)))
        A('s_cmp_ge_u32 %s, 64' % s(S_T2))
        A('s_cselect_b32 %s, %s, 0' % (s(S_T0), s(S_T0)))
    A('s_cmp_eq_u32 %s, 1' % s(S_T0))
    A('s_cbranch_scc1 %s' % ok)
    A('s_sleep 4')
    A('s_add_u32 %s, %s, 1' % (s(S_SPIN), s(S_SPIN)))
    A('s_cmp_lt_u32 %s, %d' % (s(S_SPIN), SPIN_MAX))
    A('s_cbranch_scc1 %s' % lp)
    A('s_branch %s' % abort)
    A.put(ok)
    if NEAR:
        A('s_and_b32 %s, %s, 3' % (s(S_P8), s(S_P8)))
        A('s_sub_u32 %s, %s, 1' % (s(S_P8), s(S_P8)))
        A('s_lshl_b32 %s, %s, 13' % (s(S_P8), s(S_P8)))
    if is_h:
        A('s_cmp_eq_u32 %s, 0' % s(S_T3))
        A('s_cselect_b32 %s, 1, 0' % s(S_FAST))
        A('s_mov_b32 %s, 7' % s(S_KVOK))


def chain_prog_add(A):
    l = A.label('pa')
    A('s_cmp_lg_u32 %s, 3' % s(S_WV))
    A('s_cbranch_scc1 %s' % l)
    A('s_mov_b64 exec, 1')
    A('v_mov_b32 v36, %d' % D_PROG)
    A('v_mov_b32 v37, 1')
    A('global_atomic_add v36, v37, %s' % s(P_DBG, 2))
    A('s_mov_b64 exec, -1')
    A.put(l)


lattn = A.label('attnq')
lh, lv, lo, los, lwork = A.label('hrole'), A.label('vrole'), A.label('other'), A.label('orole'), A.label('work')
A('s_cmp_ge_u32 s2, 256')
A('s_cbranch_scc1 %s' % done)
load_ptrs(A)
A('s_sub_u32 s3, 0, %s' % s(P_WS))
A('s_and_b32 s3, s3, 0x1fffff')
A('s_add_u32 %s, %s, s3' % (s(P_WS), s(P_WS)))
A('s_addc_u32 %s, %s, 0' % (s(P_WS + 1), s(P_WS + 1)))
A('s_getreg_b32 s3, hwreg(HW_REG_XCC_ID)')
A('s_and_b32 s3, s3, 7')
A('s_cmp_lg_u32 s3, %d' % int(os.environ.get('HXCD', 0)))
A('s_cbranch_scc1 %s' % lo)
bcast_atomic(A, D_H, 1, S_H)
A('s_cmp_lt_u32 %s, 32' % s(S_H))
A('s_cbranch_scc1 %s' % lh)
A.put(lo)
lo2 = A.label('other2')
A('s_cmp_lg_u32 s3, %d' % int(os.environ.get('VXCD', 1)))
A('s_cbranch_scc1 %s' % lo2)
bcast_atomic(A, D_V, 1, S_H)
A('s_cmp_lt_u32 %s, %d' % (s(S_H), NV))
A('s_cbranch_scc1 %s' % lv)
A.put(lo2)
bcast_atomic(A, D_O, 1, S_H)
A('s_mov_b32 s82, %s' % s(S_H))
A('s_mov_b32 s76, 0')
A('s_mov_b32 s77, 0')
A.put(lwork)
lchk = A.label('chk')
A('s_cmp_lg_u32 s76, 0')
A('s_cbranch_scc1 %s' % lchk)
A('s_cmp_gt_u32 s77, %d' % NINIT)
A('s_cselect_b32 s76, 1, 0')
A.put(lchk)
lnc = A.label('nc')
lnc2 = A.label('nc2')
A('s_cmp_lt_u32 s82, %d' % (NO + NAT))
A('s_cbranch_scc1 %s' % lnc2)
A('s_cmp_lg_u32 s76, 1')
A('s_cbranch_scc1 %s' % lnc)
bcast_atomic(A, D_H, 0, S_T0)
A('s_cmp_ge_u32 %s, 32' % s(S_T0))
A('s_cbranch_scc1 %s' % lnc)
bcast_atomic(A, D_SLOW, 1, S_T0)
bcast_atomic(A, D_H, 1, S_H)
A('s_cmp_lt_u32 %s, 32' % s(S_H))
A('s_cbranch_scc1 %s' % lh)
A.put(lnc)
A('s_cmp_lg_u32 s76, 1')
A('s_cbranch_scc1 %s' % lnc2)
bcast_atomic(A, D_V, 0, S_T0)
A('s_cmp_ge_u32 %s, %d' % (s(S_T0), NV))
A('s_cbranch_scc1 %s' % lnc2)
bcast_atomic(A, D_SLOWV, 1, S_T0)
bcast_atomic(A, D_V, 1, S_H)
A('s_cmp_lt_u32 %s, %d' % (s(S_H), NV))
A('s_cbranch_scc1 %s' % lv)
A.put(lnc2)
A('s_cmp_eq_u32 s76, 1')
A('s_cselect_b32 s76, 2, s76')
lgen = A.label('gen')
A('s_cmp_lg_u32 s76, 2')
A('s_cbranch_scc1 %s' % lgen)
A('s_mov_b32 %s, s82' % s(S_H))
A('s_cmp_lt_u32 s82, %d' % NO)
A('s_cbranch_scc1 %s' % los)
A('s_cmp_lt_u32 s82, %d' % (NO + NAT))
A('s_cbranch_scc1 %s' % lattn)
A.put(lgen)
bcast_atomic(A, D_Q, 1, S_TASK)
A('s_add_u32 s77, %s, 1' % s(S_TASK))


def qkv2(WN):
    A('s_lshr_b32 s58, %s, 4' % s(S_A))
    A('s_and_b32 s56, %s, 15' % s(S_A))
    A('s_cmp_eq_u32 s58, 1')
    A('s_cselect_b32 s44, %s, %s' % (s(P_WK), s(P_WQ)))
    A('s_cselect_b32 s45, %s, %s' % (s(P_WK + 1), s(P_WQ + 1)))
    A('s_cmp_eq_u32 s58, 2')
    A('s_cselect_b32 s44, %s, s44' % s(P_WV))
    A('s_cselect_b32 s45, %s, s45' % s(P_WV + 1))
    A('s_and_b32 s45, s45, 0xffff')
    A('s_mov_b32 s46, 0x%x' % (640 * 8192))
    A('s_mov_b32 s47, 0x00020000')
    make_srd(A, 48, P_BX, 2048 * 1280)
    make_srd(A, 52, P_WS, WS_SIZE)
    A('s_lshl_b32 s66, s56, 9')
    A('s_mul_i32 s67, %s, 1280' % s(S_B))
    A('s_lshl_b32 s68, s58, 24')
    A('s_lshl_b32 s59, %s, 13' % s(S_B))
    A('s_add_u32 s68, s68, s59')
    A('s_add_u32 s68, s68, s66')
    gemm_tile(A, 4, WN, 640, Operand('IC', 44, 8192, 66), Operand('KC', 48, 1280, 67), store_epilogue_bf16(A, 52, 68, 8192, sc1=True), 0)


bounds = [64, 320, NPREP, 80, 0, 81, 80, 0]
lb1 = A.label('b1')
linit = A.label('tinit')
A('s_cmp_lt_u32 %s, %d' % (s(S_TASK), NINIT))
A('s_cbranch_scc1 %s' % linit)
A('s_sub_u32 %s, %s, %d' % (s(S_TASK), s(S_TASK), NINIT))
A('s_cmp_lt_u32 %s, 32' % s(S_TASK))
A('s_cbranch_scc1 %s' % lb1)
A('s_sub_u32 %s, %s, 32' % (s(S_TASK), s(S_TASK)))
labs = [A.label('task') for _ in bounds]
for b, l in zip(bounds, labs):
    A('s_cmp_lt_u32 %s, %d' % (s(S_TASK), b))
    A('s_cbranch_scc1 %s' % l)
    A('s_sub_u32 %s, %s, %d' % (s(S_TASK), s(S_TASK), b))
A('s_mov_b32 %s, s82' % s(S_H))
A('s_cmp_lt_u32 s82, %d' % NO)
A('s_cbranch_scc1 %s' % los)
A.put(lattn)
bcast_atomic(A, D_AQ, 1, S_TASK)
A('s_cmp_lt_u32 %s, 512' % s(S_TASK))
A('s_cbranch_scc1 %s' % labs[7])
A('s_branch %s' % done)
lbig = A.label('big')
A.put(linit)
make_srd(A, 44, P_WS, WS_SIZE)
make_srd(A, 48, P_MEM0, 10240)
A('s_lshl_b32 %s, %s, 3' % (s(S_A), s(S_TASK)))
A('s_add_u32 %s, %s, 8' % (s(S_B), s(S_A)))
A('s_min_u32 %s, %s, %d' % (s(S_B), s(S_B), NINIT_V))
lip = A.label('il')
A.put(lip)
ring_init_body(A, S_A)
A('s_add_u32 %s, %s, 1' % (s(S_A), s(S_A)))
A('s_cmp_lt_u32 %s, %s' % (s(S_A), s(S_B)))
A('s_cbranch_scc1 %s' % lip)
A('s_mov_b32 %s, %d' % (s(S_C), D_INIT))
signal(A, P_DBG, S_C)
A('s_branch %s' % lwork)
A.put(labs[0])
A('s_and_b32 %s, %s, 31' % (s(S_A), s(S_TASK)))
A('s_add_u32 %s, %s, 16' % (s(S_A), s(S_A)))
A('s_lshr_b32 %s, %s, 5' % (s(S_C), s(S_TASK)))
A('s_lshl_b32 %s, %s, 7' % (s(S_B), s(S_C)))
A('s_mov_b32 %s, %d' % (s(S_C), D_KV))
qkv2(2)
signal(A, P_DBG, S_C)
A('s_branch %s' % lwork)
A.put(labs[1])
if os.environ.get('GATE'):
    lg_ = A.label('gate')
    A('s_cmp_ge_u32 %s, 160' % s(S_TASK))
    A('s_cbranch_scc1 %s' % lg_)
    A('s_mov_b32 %s, %d' % (s(S_A), D_HL))
    A('s_mov_b32 %s, %d' % (s(S_B), int(os.environ['GATE'])))
    wait_ge(A, P_DBG, S_A, S_B, 1, sleep=16, wg=True, maxspin=40)
    A.put(lg_)
A('s_add_u32 %s, %s, 32' % (s(S_TASK), s(S_TASK)))
A.put(lb1)
order = [(1, 1), (2, 1), (1, 2), (2, 2), (0, 0), (0, 1), (1, 3), (2, 3), (0, 2), (1, 4), (2, 4), (0, 3), (1, 5), (2, 5), (0, 4), (1, 6), (2, 6), (0, 5), (1, 7), (2, 7), (0, 6), (0, 7), (0, 0), (0, 0)]
words = [sum(((k * 8 + rb) << (5 * i)) for i, (k, rb) in enumerate(order[6 * w:6 * w + 6])) for w in range(4)]
A('s_lshr_b32 %s, %s, 4' % (s(S_C), s(S_TASK)))
A('s_mul_i32 %s, %s, 43' % (s(S_A), s(S_C)))
A('s_lshr_b32 %s, %s, 8' % (s(S_A), s(S_A)))
A('s_mul_i32 %s, %s, 6' % (s(S_B), s(S_A)))
A('s_sub_u32 %s, %s, %s' % (s(S_C), s(S_C), s(S_B)))
A('s_mul_i32 %s, %s, 5' % (s(S_C), s(S_C)))
A('s_mov_b32 %s, 0x%x' % (s(S_B), words[0]))
for w in range(1, 4):
    A('s_cmp_eq_u32 %s, %d' % (s(S_A), w))
    A('s_cselect_b32 %s, 0x%x, %s' % (s(S_B), words[w], s(S_B)))
A('s_lshr_b32 %s, %s, %s' % (s(S_B), s(S_B), s(S_C)))
A('s_bfe_u32 %s, %s, 0x20003' % (s(S_T0), s(S_B)))
A('s_and_b32 %s, %s, 7' % (s(S_C), s(S_B)))
A('s_and_b32 %s, %s, 15' % (s(S_A), s(S_TASK)))
A('s_lshl_b32 %s, %s, 4' % (s(S_T1), s(S_T0)))
A('s_add_u32 %s, %s, %s' % (s(S_A), s(S_A), s(S_T1)))
A('s_lshl_b32 %s, %s, 8' % (s(S_B), s(S_C)))
A('s_lshl_b32 %s, %s, 2' % (s(S_C), s(S_C)))
A('s_cmp_eq_u32 %s, 0' % s(S_T0))
A('s_cselect_b32 %s, %d, %d' % (s(S_T0), D_QD, D_KV))
A('s_add_u32 %s, %s, %s' % (s(S_C), s(S_C), s(S_T0)))
A.put(lbig)
qkv2(4)
signal(A, P_DBG, S_C)
A('s_branch %s' % lwork)
A.put(labs[4])
A('s_and_b32 %s, %s, 15' % (s(S_A), s(S_TASK)))
A('s_lshr_b32 %s, %s, 4' % (s(S_C), s(S_TASK)))
A('s_lshl_b32 %s, %s, 8' % (s(S_B), s(S_C)))
A('s_lshl_b32 %s, %s, 2' % (s(S_C), s(S_C)))
A('s_add_u32 %s, %s, %d' % (s(S_C), s(S_C), D_QD))
A('s_branch %s' % lbig)
A.put(labs[2])
make_srd(A, 44, P_WS, WS_SIZE)
make_srd(A, 48, P_WR, 2048 * 642)
make_srd(A, 52, P_WI, 2048 * 642)
A('s_lshl_b32 %s, %s, 3' % (s(S_A), s(S_TASK)))
A('s_add_u32 %s, %s, 8' % (s(S_B), s(S_A)))
A('s_min_u32 %s, %s, %d' % (s(S_B), s(S_B), NPREP_V))
lp = A.label('pl')
A.put(lp)
l1, l2, le = A.label('pp'), A.label('pp'), A.label('pp')
A('s_mov_b32 %s, %s' % (s(S_C), s(S_A)))
A('s_cmp_ge_u32 %s, %d' % (s(S_C), PREP_WG_F))
A('s_cbranch_scc1 %s' % l1)
prep_f2g2(A, S_C)
A('s_branch %s' % le)
A.put(l1)
A('s_sub_u32 %s, %s, %d' % (s(S_C), s(S_C), PREP_WG_F))
A('s_cmp_ge_u32 %s, %d' % (s(S_C), PREP_WG_W))
A('s_cbranch_scc1 %s' % l2)
prep_wt(A, S_C)
A('s_branch %s' % le)
A.put(l2)
A('s_sub_u32 %s, %s, %d' % (s(S_C), s(S_C), PREP_WG_W))
prep_c2(A, S_C)
A.put(le)
A('s_add_u32 %s, %s, 1' % (s(S_A), s(S_A)))
A('s_cmp_lt_u32 %s, %s' % (s(S_A), s(S_B)))
A('s_cbranch_scc1 %s' % lp)
A('s_mov_b32 %s, %d' % (s(S_C), D_PREP))
signal(A, P_DBG, S_C)
A('s_branch %s' % lwork)


def dep(off, thr):
    A('s_mov_b32 %s, %d' % (s(S_A), off))
    A('s_mov_b32 %s, %d' % (s(S_B), thr))
    wait_ge(A, P_DBG, S_A, S_B, 1, sleep=int(os.environ.get('WSLEEP', 24)), wg=True)
A.put(labs[3])
dep(D_PREP, NPREP)
a1_tile(A, S_TASK, 0, sc1=True)
A('s_mov_b32 %s, %d' % (s(S_C), D_A1))
signal(A, P_DBG, S_C)
A('s_branch %s' % lwork)
A.put(labs[5])
dep(D_A1, 80)
a2_task(A, S_TASK, 0, sc1=True)
A('s_mov_b32 %s, %d' % (s(S_C), D_A2))
signal(A, P_DBG, S_C)
A('s_branch %s' % lwork)
A.put(labs[6])
dep(D_A2, 81)
a3_tile(A, S_TASK, 0, sc1=True)
A('s_waitcnt vmcnt(0)')
A('s_branch %s' % lwork)
A.put(labs[7])
A('s_lshr_b32 %s, %s, 3' % (s(S_C), s(S_TASK)))
A('s_lshr_b32 %s, %s, 3' % (s(S_A), s(S_C)))
A('s_lshl_b32 %s, %s, 2' % (s(S_A), s(S_A)))
A('s_add_u32 %s, %s, %d' % (s(S_A), s(S_A), D_QD))
A('s_mov_b32 %s, 16' % s(S_B))
wait_ge(A, P_DBG, S_A, S_B, 1, sleep=int(os.environ.get('WSLEEP', 24)), wg=True)
kv_index(A, S_C, S_A, S_B)
A('s_cmp_lt_u32 %s, 8' % s(S_C))
A('s_cselect_b32 %s, 64, 32' % s(S_B))
wait_ge(A, P_DBG, S_A, S_B, 1, sleep=int(os.environ.get('WSLEEP', 24)), wg=True)
dep(D_INIT, NINIT)
def attn_mid():
    A('s_mov_b32 s64, s57')
    A('s_lshl_b32 %s, %s, 2' % (s(S_A), s(S_C)))
    A('s_add_u32 %s, %s, 0x%x' % (s(S_A), s(S_A), R_KVM))
    A('s_mov_b32 %s, 31' % s(S_B))
    wait_ge(A, P_WS, S_A, S_B, 14, signed=True, sleep=int(os.environ.get('WSLEEP', 8)), wg=True)
    A('s_mov_b32 s57, s64')
attn_task(A, S_TASK, 0, sc1=True, mid_wait=attn_mid)
A('s_lshl_b32 %s, %s, 2' % (s(S_C), s(S_C)))
A('s_add_u32 %s, %s, 0x%x' % (s(S_C), s(S_C), R_CNT))
signal(A, P_WS, S_C)
A('s_branch %s' % lattn)

A.put(los)
A('s_mov_b32 s72, %s' % s(S_H))
dep(D_INIT, NINIT)
if os.environ.get('GATE'):
    A('s_mov_b32 %s, %d' % (s(S_A), D_HL))
    A('s_mov_b32 %s, %d' % (s(S_B), int(os.environ['GATE'])))
    wait_ge(A, P_DBG, S_A, S_B, 1, sleep=16, wg=True, maxspin=40)
def os_wait(A, seg):
    A('s_lshl_b32 s73, %s, 2' % s(seg))
    A('s_add_u32 s73, s73, 0x%x' % R_CNT)
    A('s_mov_b32 s74, 7')
    global S_SPIN
    lp, ok = A.label('wl'), A.label('wo')
    A('s_waitcnt vmcnt(0)')
    A('s_cmp_lg_u32 s56, 0')
    A('s_cbranch_scc1 %s' % ok)
    A('v_mov_b32 v28, s73')
    A('s_mov_b32 s75, 0')
    A.put(lp)
    A('global_load_dword v29, v28, %s sc1' % s(P_WS, 2))
    A('s_waitcnt vmcnt(0)')
    A('v_readfirstlane_b32 s76, v29')
    A('s_cmp_ge_i32 s76, s74')
    A('s_cbranch_scc1 %s' % ok)
    A('s_sleep 12')
    A('s_add_u32 s75, s75, 1')
    A('s_cmp_lt_u32 s75, %d' % SPIN_MAX)
    A('s_cbranch_scc1 %s' % lp)
    A('s_branch %s' % abort)
    A.put(ok)
    A('s_barrier')
ostream(A, 72, wait_fn=os_wait, sc1=True, ngrp=NGRP)
A('s_branch %s' % done)

A.put(lh)
A('s_mov_b32 %s, -1' % s(S_KVOK))
stamps = bool(os.environ.get('STAMPSET'))
for i in range(8):
    A('s_mov_b32 %s, 0' % s(S_ST + i))
hdone = A.label('hdone')
h_cu(A, abort, hdone, kv_sc1=True, stamps=stamps, kv_wait=chain_kv_wait, prog_add=chain_prog_add, mode_wait=lambda: chain_start_wait(True))
A.put(hdone)
if stamps:
    A('s_lshl_b32 %s, %s, 2' % (s(S_T0), s(S_H)))
    A('s_add_u32 %s, %s, %s' % (s(S_T0), s(S_T0), s(S_WV)))
    A('s_lshl_b32 %s, %s, 5' % (s(S_T0), s(S_T0)))
    A('s_add_u32 %s, %s, 0x%x' % (s(S_T0), s(S_T0), 200 * MB))
    for i in range(8):
        A('v_mov_b32 %s, %s' % (v(40 + i), s(S_ST + i)))
    A('v_mov_b32 v2, 0')
    A('buffer_store_dwordx4 v[40:43], v2, %s, %s offen' % (s(S_WS, 4), s(S_T0)))
    A('buffer_store_dwordx4 v[44:47], v2, %s, %s offen offset:16' % (s(S_WS, 4), s(S_T0)))
A('s_branch %s' % done)
A.put(lv)
def v_prog(A):
    l = A.label('pa')
    A('s_cmp_lg_u32 %s, 3' % s(S_WV))
    A('s_cbranch_scc1 %s' % l)
    A('s_mov_b64 exec, 1')
    A('s_lshl_b32 %s, %s, 2' % (s(S_T0), s(S_STEP)))
    A('s_add_u32 %s, %s, 0x%x' % (s(S_T0), s(S_T0), R_KVM - (0 if os.environ.get('CHAIN', 'k_chain211') in ('k_chain7', 'k_chain11', 'k_chain12', 'k_chain13', 'k_chain211', 'k_chain212', 'k_chain213') else 4)))
    A('v_mov_b32 v22, %s' % s(S_T0))
    A('v_mov_b32 v23, 1')
    A('global_atomic_add v22, v23, %s' % s(P_WS, 2))
    A('s_mov_b64 exec, -1')
    A.put(l)
if os.environ.get('CHAIN', 'k_chain211') == 'k_chain10':
    v_cu(A, abort, done, prog_add=v_prog, init_wait=chain_init_wait, mode_wait=lambda: h_mode_wait(A, abort, D_V, D_SLOWV))
else:
    v_cu(A, abort, done, prog_add=v_prog, init_wait=lambda: chain_start_wait(False))
A.put(abort)
A('s_mov_b64 exec, -1')
A('v_mov_b32 v1, 252')
A('v_mov_b32 v2, 1')
A('global_atomic_add v1, v2, %s' % s(P_DBG, 2))
A.put(done)
A('s_endpgm')
descs.append(kernel_desc('main_kernel'))
launches.append('; @launch kernel=main_kernel grid=(256,1,1) block=(256,1,1) lds=%d' % max(L_END, OS_LDS, 131072))

A.lines = [l.replace('{SC}', ' sc1').replace(' lds sc1', ' sc1 lds') for l in A.lines]
txt = hdr() + '\n'.join(launches) + '\n.amdgcn_target "amdgcn-amd-amdhsa--gfx950"\n' + A.text() + ''.join(descs)
open(sys.argv[1] if len(sys.argv) > 1 else 'out.s', 'w').write(txt)
```
